```python
import torch

def _softmax(x, axis=-1):
    return torch.softmax(x, dim=axis)
def _gelu(x):
    return torch.nn.functional.gelu(x, approximate="tanh")
def _silu(x):
    return torch.nn.functional.silu(x)
def _sigmoid(x):
    return torch.sigmoid(x)
def _layernorm(x, axis=-1, eps=1e-5):
    m = x.mean(dim=axis, keepdim=True)
    v = x.var(dim=axis, keepdim=True, unbiased=False)
    return (x - m) / torch.sqrt(v + eps)
def _scatter_add(tgt, idx, src, axis=0):
    return tgt.clone().index_add_(axis, idx, src)
def _segment_sum(src, seg, n):
    out = torch.zeros((n,) + src.shape[1:], dtype=src.dtype)
    return out.index_add_(0, seg, src)
def _pad(x, pw):
    flat = tuple(v for pair in reversed(pw) for v in pair)
    return torch.nn.functional.pad(x, flat)

kernel_name = 'recurrent_scan__sliding_block_cached__moe_arch_mod__prompt'

def setup_inputs():

    _w = (lambda a: (lambda t: t.to(torch.bfloat16) if t.is_floating_point() else t)(torch.as_tensor(a)))
    def _A_setup():
        B, Sq, D = 1, 2048, 640
        Hq, Hkv, Sk, Dh = 32, 32, 2048, 192
        assert Hq % Hkv == 0, (Hq, Hkv)
        return {
            "x": _w((lambda *s: torch.randn(*s, dtype=torch.bfloat16) * 0.05)(B, Sq, D)),
            "k_cache": _w((lambda *s: torch.randn(*s, dtype=torch.bfloat16) * 0.8)(B, Hkv, Sk, Dh)),
            "v_cache": _w((lambda *s: torch.randn(*s, dtype=torch.bfloat16) * 0.2)(B, Hkv, Sk, Dh)),
            "wq": _w((lambda *s: torch.randn(*s, dtype=torch.bfloat16) * 0.8)(D, Hq * Dh) * (D ** -0.5)),
            "wo": _w((lambda *s: torch.randn(*s, dtype=torch.bfloat16) * 0.2)(Hq * Dh, D) * ((Hq * Dh) ** -0.5)),
        }
    _A_in = _A_setup()

    def _B_setup():
        B, S, D, F, C = 1, 2048, 640, 1536, 2
        return {
            "x": _w((lambda *s: torch.randn(*s, dtype=torch.bfloat16) * 0.05)(B, S, D)),
            "w_r": _w((lambda *s: torch.randn(*s, dtype=torch.bfloat16) * 0.2)(D)),
            "w_gate": _w((lambda *s: torch.randn(*s, dtype=torch.bfloat16) * 0.1)(D, F)),
            "w_up": _w((lambda *s: torch.randn(*s, dtype=torch.bfloat16) * 0.1)(D, F)),
            "w_down": _w((lambda *s: torch.randn(*s, dtype=torch.bfloat16) * 0.1)(F, D)),
        }
    _B_in = _B_setup()

    return {
        "A_x": _A_in["x"],
        "A_k_cache": _A_in["k_cache"],
        "A_v_cache": _A_in["v_cache"],
        "A_wq": _A_in["wq"],
        "A_wo": _A_in["wo"],
        "B_x": _B_in["x"],
        "B_w_r": _B_in["w_r"],
        "B_w_gate": _B_in["w_gate"],
        "B_w_up": _B_in["w_up"],
        "B_w_down": _B_in["w_down"],
    }

def reference(A_x, A_k_cache, A_v_cache, A_wq, A_wo, B_x, B_w_r, B_w_gate, B_w_up, B_w_down):
    def _A_ref(x, k_cache, v_cache, wq, wo):
        B, Sq, D = x.shape
        Hq, Dh = 32, 192
        Hkv, Sk = k_cache.shape[1], k_cache.shape[2]
        W = min(4096, max(256, Sk // 4))
        rep = Hq // Hkv
        q = (lambda x, *d: x.permute(*d))((x @ wq).reshape(B, Sq, Hq, Dh), 0, 2, 1, 3)
        k = (lambda x, n, axis: torch.repeat_interleave(x, n, dim=axis))(k_cache[:, :, Sk - W:, :], rep, axis=1)
        v = (lambda x, n, axis: torch.repeat_interleave(x, n, dim=axis))(v_cache[:, :, Sk - W:, :], rep, axis=1)
        scores = torch.einsum("bhqd,bhkd->bhqk", q, k) * (Dh ** -0.5)
        p = _softmax(scores, axis=-1)
        o = torch.einsum("bhqk,bhkd->bhqd", p, v)
        return (lambda x, *d: x.permute(*d))(o, 0, 2, 1, 3).reshape(B, Sq, Hq * Dh) @ wo

    def _B_ref(x, w_r, w_gate, w_up, w_down):
        B, S, D = x.shape
        C = 2
        r = x @ w_r
        idx = torch.argsort(-r, axis=-1)[:, :C]
        idx_e = (lambda x, n, axis: torch.repeat_interleave(x, n, dim=axis))(idx.reshape(B, C, 1), D, axis=2)
        x_sel = (lambda x, i, axis: torch.take_along_dim(x, i, dim=axis))(x, idx_e, axis=1)
        g = _silu(x_sel @ w_gate)
        u = x_sel @ w_up
        y = (g * u) @ w_down
        r_sel = _sigmoid((lambda x, i, axis: torch.take_along_dim(x, i, dim=axis))(r, idx, axis=1))
        y = y * r_sel.reshape(B, C, 1)
        b_off = (torch.arange(B) * S).reshape(B, 1)
        flat_idx = (idx + b_off).reshape(B * C)
        zero = (x * 0.0).reshape(B * S, D)
        upd = _scatter_add(zero, flat_idx, y.reshape(B * C, D), axis=0)
        return x + upd.reshape(B, S, D)

    x = A_x
    xn = _layernorm(x, axis=-1)
    s = _A_ref(xn, A_k_cache, A_v_cache, A_wq, A_wo)
    g = _silu(_B_ref(xn, B_w_r, B_w_gate, B_w_up, B_w_down))
    return x + s * g
```

```python
NAME = "recurrent_scan__sliding_block_cached__moe_arch_mod__prompt"

HEADER_COMMENT = """; Kernarg layout for this problem (104 bytes, ptrs only, base s[0:1]):
"""

DOC = """; Generated by gen/main.py (hand-written generator + list scheduler). One workgroup per (head, 256 query rows), 4 waves x 64 rows.
"""

class Kernel:
    def __init__(self, name, grid, block, lds, vgprs, accum, sgprs=96):
        self.name, self.grid, self.block, self.lds = name, grid, block, lds
        self.vgprs, self.accum, self.sgprs = vgprs, accum, sgprs
        self.lines = []
        self._lab = 0
    def __call__(self, s):
        for l in s.split("\n"):
            l = l.strip()
            if l:
                self.lines.append(("" if l.endswith(":") else "    ") + l)
    def label(self, base="L"):
        self._lab += 1
        return f"{self.name[:12]}_{base}_{self._lab}"
    def text(self):
        return (f".globl {self.name}\n{getattr(self, 'pre', '')}.p2align 8\n.type {self.name},@function\n{self.name}:\n"
                + "\n".join(self.lines) + "\n")
    def desc(self):
        return (f".p2align 6\n.amdhsa_kernel {self.name}\n"
                f"  .amdhsa_next_free_vgpr {self.vgprs}\n  .amdhsa_next_free_sgpr {self.sgprs}\n"
                f"  .amdhsa_accum_offset {self.accum}\n  .amdhsa_group_segment_fixed_size 0\n"
                f"  .amdhsa_kernarg_size 104\n  .amdhsa_user_sgpr_count 2\n"
                f"  .amdhsa_user_sgpr_kernarg_segment_ptr 1\n  .amdhsa_system_sgpr_workgroup_id_x 1\n"
                f"  .amdhsa_float_denorm_mode_32 3\n"
                f".end_amdhsa_kernel\n")

def build_file(kernels, launches=None):
    launches = launches or kernels
    s = HEADER_COMMENT
    if len(launches) == 1 and launches[0].name == NAME + "_kernel":
        k = launches[0]
        s += f"; @launch grid=({k.grid},1,1) block=({k.block},1,1) lds={k.lds}\n"
        launches = []
    for k in launches:
        s += (f"; @launch kernel={k.name} grid=({k.grid},1,1) block=({k.block},1,1) lds={k.lds}\n")
    s += '.amdgcn_target "amdgcn-amd-amdhsa--gfx950"\n' + DOC + '.text\n'
    for k in kernels:
        s += k.text()
    s += '.section .rodata,"a"\n'
    for k in kernels:
        s += k.desc()
    return s

def srd(k, d, base, nbytes):
    k(f"s_mov_b32 s{d}, s{base}")
    k(f"s_and_b32 s{d+1}, s{base+1}, 0xffff")
    k(f"s_mov_b32 s{d+2}, {nbytes:#x}")
    k(f"s_mov_b32 s{d+3}, 0x00020000")

def interleave(mfmas, fillers, per_gap=None):
    out = []
    n = len(mfmas); m = len(fillers)
    j = 0
    for i, mf in enumerate(mfmas):
        out.append(mf)
        tgt = (i + 1) * m // n
        while j < tgt:
            out.append(fillers[j]); j += 1
    return out
```

```python
import struct
from asmlib import *
def fbits(x): return struct.unpack("<I", struct.pack("<f", x))[0]
OPT = {}
WS_SIZE = 268435456
XNF   = 0x0000000
KEYS  = 0x0300000
TOP   = 0x0302000
FLAGS = 0x03C0000
RECS  = 0x0304000
EPOCH = 0x030E000
CNT   = 0x030C000
GU    = 0x0320000
YP    = 0x0380000
OF    = 0x1000000
PART  = 0x3000000
STAMP = 0x8000000
LOG2E = 1.4426950408889634
MF = "v_mfma_f32_16x16x32_bf16"

def q(f, r, n=4): return f"{f}[{r}:{r+n-1}]"

def srd_off(k, d, base, off_s, nbytes):
    if off_s is None:
        k(f"s_mov_b32 s{d}, s{base}\ns_and_b32 s{d+1}, s{base+1}, 0xffff")
    else:
        k(f"s_add_u32 s{d}, s{base}, {off_s}\ns_addc_u32 s{d+1}, s{base+1}, 0\ns_and_b32 s{d+1}, s{d+1}, 0xffff")
    k(f"s_mov_b32 s{d+2}, {nbytes}\ns_mov_b32 s{d+3}, 0x00020000")

def round_bf16(k, dst, src):
    k(f"v_cvt_pk_bf16_f32 v{dst}, 0, v{src}")

def silu(k, dst, src, tmp):
    k(f"v_mul_f32 v{tmp}, s90, v{src}\nv_exp_f32 v{tmp}, v{tmp}\ns_nop 0\nv_add_f32 v{tmp}, 1.0, v{tmp}\nv_rcp_f32 v{tmp}, v{tmp}\ns_nop 0\nv_mul_f32 v{dst}, v{src}, v{tmp}")

def top2(k, srd, vt, lane):
    a = vt + 32; m1 = vt + 33; m2 = vt + 34; t = vt + 35
    k(f"v_lshlrev_b32 v{a}, 4, v{lane}\ns_mov_b32 s42, {KEYS}\ns_mov_b32 s43, {KEYS+4096}")
    for i in range(8):
        k(f"buffer_load_dwordx4 {q('v', vt+4*i)}, v{a}, s[{srd}:{srd+3}], s{42 + i//4} offen offset:{(i%4)*1024}")
    k("s_waitcnt vmcnt(0)")
    top2_compute(k, vt)

def top2_lines(vt):
    m1 = vt + 33; m2 = vt + 34; t = vt + 35; a = vt + 32
    L = [f"v_max_u32 v{m1}, v{vt}, v{vt+1}", f"v_min_u32 v{m2}, v{vt}, v{vt+1}"]
    for i in range(2, 32):
        L += [f"v_med3_u32 v{m2}, v{m1}, v{m2}, v{vt+i}", f"v_max_u32 v{m1}, v{m1}, v{vt+i}"]
    p1, p2 = vt, vt + 1
    for step in ("row_ror:8", "row_ror:4", "row_ror:2", "row_ror:1"):
        L += ["s_nop 1", f"v_mov_b32_dpp v{p1}, v{m1} {step} row_mask:0xf bank_mask:0xf",
              f"v_mov_b32_dpp v{p2}, v{m2} {step} row_mask:0xf bank_mask:0xf",
              f"v_min_u32 v{t}, v{m1}, v{p1}", f"v_max_u32 v{m1}, v{m1}, v{p1}", f"v_max3_u32 v{m2}, v{t}, v{m2}, v{p2}"]
    for sw in ("v_permlane16_swap_b32", "v_permlane32_swap_b32"):
        L += [f"v_mov_b32 v{p1}, v{m1}", f"v_mov_b32 v{p2}, v{m2}", "s_nop 1", f"{sw} v{m1}, v{p1}", f"{sw} v{m2}, v{p2}", "s_nop 1",
              f"v_min_u32 v{t}, v{m1}, v{p1}", f"v_max_u32 v{m1}, v{m1}, v{p1}", f"v_max3_u32 v{m2}, v{t}, v{m2}, v{p2}"]
    L += ["s_nop 0", f"v_readfirstlane_b32 s40, v{m1}", f"v_readfirstlane_b32 s41, v{m2}"]
    return L
def top2_compute(k, vt):
    for l in top2_lines(vt): k(l)

import math
CSC = LOG2E / math.sqrt(192.0)
STATS = 0x0310000
def top2_gen(vt, n, m1, m2, t, cross):
    L = [f"v_max_u32 v{m1}, v{vt}, v{vt+1}", f"v_min_u32 v{m2}, v{vt}, v{vt+1}"]
    for i in range(2, n):
        L += [f"v_med3_u32 v{m2}, v{m1}, v{m2}, v{vt+i}", f"v_max_u32 v{m1}, v{m1}, v{vt+i}"]
    if not cross: return L
    p1, p2 = vt, vt + 1
    for step in ("row_ror:8", "row_ror:4", "row_ror:2", "row_ror:1"):
        L += ["s_nop 1", f"v_mov_b32_dpp v{p1}, v{m1} {step} row_mask:0xf bank_mask:0xf",
              f"v_mov_b32_dpp v{p2}, v{m2} {step} row_mask:0xf bank_mask:0xf",
              f"v_min_u32 v{t}, v{m1}, v{p1}", f"v_max_u32 v{m1}, v{m1}, v{p1}", f"v_max3_u32 v{m2}, v{t}, v{m2}, v{p2}"]
    for sw in ("v_permlane16_swap_b32", "v_permlane32_swap_b32"):
        L += [f"v_mov_b32 v{p1}, v{m1}", f"v_mov_b32 v{p2}, v{m2}", "s_nop 1", f"{sw} v{m1}, v{p1}", f"{sw} v{m2}, v{p2}", "s_nop 1",
              f"v_min_u32 v{t}, v{m1}, v{p1}", f"v_max_u32 v{m1}, v{m1}, v{p1}", f"v_max3_u32 v{m2}, v{t}, v{m2}, v{p2}"]
    return L

LNF = 0x03F0000
OFL = 0x03E8000
PFL = 0x0400000
```

```python
import re, sys

REG = re.compile(r"\b([vas])(?:\[(\d+):(\d+)\]|(\d+))")
def regs(op):
    out = []
    op = op.strip()
    for m in REG.finditer(op):
        f = m.group(1)
        if m.group(2) is not None: out += [(f, i) for i in range(int(m.group(2)), int(m.group(3)) + 1)]
        else: out.append((f, int(m.group(4))))
    if re.search(r"\bvcc(_lo|_hi)?\b", op): out += [("s", "vcc")]
    if re.search(r"\bexec(_lo|_hi)?\b", op): out += [("s", "exec")]
    if re.search(r"\bm0\b", op): out += [("s", "m0")]
    return out

SCCW = ("s_cmp", "s_add", "s_sub", "s_min", "s_max", "s_and", "s_or", "s_xor", "s_lshl", "s_lshr", "s_ashr", "s_bfe", "s_not", "s_bitcmp", "s_abs", "s_andn2", "s_orn2", "s_nand", "s_nor", "s_xnor")
TRANS = ("v_exp_", "v_log_", "v_rcp_", "v_rsq_", "v_sqrt_", "v_sin_", "v_cos_")
class I:
    def __init__(self, text, idx):
        self.text = text; self.idx = idx
        t = text.split(";")[0].strip()
        parts = t.split(None, 1)
        self.op = parts[0]
        rest = parts[1] if len(parts) > 1 else ""
        ops = [o.strip() for o in re.split(r",(?![^\[]*\])", rest)] if rest else []
        self.ops = ops
        op = self.op
        self.kind = "salu"; self.w = []; self.r = []; self.async_w = []; self.srcc = []
        if op.startswith("v_smfmac"):
            self.kind = "mfma"; self.w = regs(ops[0]); self.a = regs(ops[1]) + regs(ops[3].split(" ")[0]); self.b = regs(ops[2]); self.srcc = list(self.w)
            self.r = self.a + self.b + self.srcc
            self.passes = 8
        elif op.startswith("v_mfma"):
            self.kind = "mfma"; self.w = regs(ops[0]); self.a = regs(ops[1]); self.b = regs(ops[2]); self.srcc = regs(ops[3].split(" ")[0])
            self.r = self.a + self.b + self.srcc
            self.passes = 8 if ("32x32" in op or "_4b" in op) else 4
        elif op.startswith("v_"):
            self.kind = "valu"
            if op.startswith("v_cmp"):
                self.w = regs(ops[0]); self.r = sum((regs(o) for o in ops[1:]), [])
                if op.startswith("v_cmpx"): self.w += [("s", "exec")]
            elif "swap" in op:
                self.w = regs(ops[0]) + regs(ops[1]); self.r = list(self.w)
            elif op.startswith(("v_add_co", "v_sub_co", "v_addc_co", "v_subb_co")):
                self.w = regs(ops[0]) + regs(ops[1]); self.r = sum((regs(o) for o in ops[2:]), [])
            elif op == "v_nop": pass
            else:
                self.w = regs(ops[0]); self.r = sum((regs(o) for o in ops[1:]), [])
                if op.startswith(("v_fmac", "v_pk_fmac", "v_dot2c", "v_writelane")) : self.r += self.w
            self.trans = op.startswith(TRANS)
            self.dpp = ("dpp" in op) or ("row_" in t) or ("quad_perm" in t)
            if self.dpp: self.r += self.w
        elif op.startswith("ds_"):
            self.kind = "ds"
            if op.startswith(("ds_read", "ds_bpermute", "ds_permute", "ds_swizzle")):
                self.async_w = regs(ops[0]); self.r = sum((regs(o.split(" ")[0]) for o in ops[1:]), [])
            else:
                self.r = sum((regs(o.split(" ")[0]) for o in ops), [])
        elif op.startswith(("buffer_", "global_")):
            self.kind = "vmem"
            self.lds = bool(re.search(r"\blds\b", t))
            self.store = "store" in op or ("atomic" in op)
            if op in ("buffer_wbl2", "buffer_inv"): self.store = False
            elif self.lds:
                self.r = sum((regs(o.split(" ")[0]) for o in ops), []) + [("s", "m0")]
            elif op.startswith("buffer_load") or op.startswith("global_load"):
                self.async_w = regs(ops[0]); self.r = sum((regs(o.split(" ")[0]) for o in ops[1:]), [])
            else:
                self.r = sum((regs(o.split(" ")[0]) for o in ops), [])
                self.data = regs(ops[0]) if op.startswith("buffer") else regs(ops[1])
                if "atomic" in op and re.search(r"\bsc0\b", t): self.async_w = regs(ops[0])
        elif op.startswith(("s_load", "s_buffer_load", "s_memtime", "s_memrealtime")):
            self.kind = "smem"; self.async_w = regs(ops[0]); self.r = sum((regs(o) for o in ops[1:]), [])
        elif op.startswith("s_"):
            if op.startswith(("s_cmp", "s_cbranch", "s_branch", "s_waitcnt", "s_nop", "s_barrier", "s_endpgm", "s_setprio", "s_sleep", "s_bitcmp", "s_setpc")):
                self.r = sum((regs(o) for o in ops), [])
                if "vcc" in op: self.r += [("s", "vcc")]
            else:
                self.w = regs(ops[0]); self.r = sum((regs(o) for o in ops[1:]), [])
                if "saveexec" in op: self.w += [("s", "exec")]
                if op.startswith(("s_bitset", "s_addk", "s_mulk", "s_cmov")): self.r += self.w
        self.states = 1
        if op == "s_nop": self.states = int(ops[0], 0) + 1

def trace(lines, loops=2, take=()):
    labels = {}
    for i, l in enumerate(lines):
        s = l.split(";")[0].strip()
        if s.endswith(":"): labels[s[:-1]] = i
    out = []; pc = 0; cnt = {}; taken = set(); itn = 0
    while pc < len(lines):
        s = lines[pc].split(";")[0].strip()
        if not s or s.endswith(":") or s.startswith("."):
            pc += 1; continue
        ins = I(s, pc); ins.raw = lines[pc]; out.append(ins)
        if ins.op == "s_endpgm": break
        if ins.op.startswith(("s_cbranch", "s_branch")):
            tgt = labels[ins.ops[0]]
            if ins.op == "s_branch": pc = tgt; continue
            m = re.search(r"@loop (\d+)", lines[pc])
            m2 = re.search(r"@takeif (.*)$", lines[pc])
            if "@second" in lines[pc]:
                c = cnt.get(pc, 0) + 1; cnt[pc] = c
                if c > 1: pc = tgt; continue
            elif m:
                c = cnt.get(pc, 0) + 1; cnt[pc] = c
                if c < int(m.group(1)): itn = c; pc = tgt; continue
                itn = 0
            elif m2:
                if eval(m2.group(1), {"it": itn, "take": take}): pc = tgt; continue
            elif ins.ops[0] in take and pc not in taken:
                taken.add(pc); pc = tgt; continue
        pc += 1
        if len(out) > 400000: raise RuntimeError("trace too long")
    return out

def pair_need(p, c):
    R = set(c.r); W = set(c.w) | set(c.async_w); PW = set(p.w)
    need = 0; why = ""
    def req(n, w):
        nonlocal need, why
        if n > need: need, why = n, w
    if p.kind == "valu":
        vw = {x for x in PW if x[0] in "va"}; sw = {x for x in PW if x[0] == "s"}
        if p.op.startswith("v_dot") and c.op != p.op and vw & (R | W): req(3, "DLop")
        if c.kind == "mfma" and vw & R: req(2, "VALU write -> MFMA read")
        if c.kind == "mfma" and ("s", "exec") in sw: req(4, "VALU exec -> MFMA")
        if c.kind == "valu":
            if c.dpp and vw & R: req(2, "VALU write -> DPP read")
            if "permlane" in c.op and vw & R: req(2, "VALU write -> permlane")
            if c.op.startswith(("v_readlane", "v_readfirstlane")) and vw & R: req(1, "VALU write -> readlane")
            if p.trans and not c.trans and vw & R: req(1, "trans -> VALU")
            if sw & R: req(2, "VALU sgpr write -> VALU read")
            if ("s", "exec") in sw and (c.dpp): req(5, "VALU exec -> DPP")
            if ("s", "exec") in sw and ("permlane" in c.op or "lane" in c.op): req(4, "cmpx -> lane op")
        if c.kind == "vmem" and sw & R: req(5, "VALU sgpr write -> VMEM read")
        if p.trans and c.kind in ("vmem", "ds") and vw & R: req(1, "trans -> mem (conservative)")
    if p.kind == "salu" and ("s", "m0") in PW and c.kind == "vmem" and getattr(c, "lds", False): req(1, "m0 write -> LDS DMA")
    if p.kind == "mfma":
        big = {4: 8, 8: 12}[p.passes]
        if c.kind == "mfma":
            if PW & (set(c.a) | set(c.b)): req(big, "MFMA D -> MFMA A/B")
            if PW & set(c.srcc) and c.srcc != p.w: req(big - 2, "MFMA D -> MFMA C partial")
            if PW & set(c.w) and not (PW & set(c.srcc)): req(big - 2, "MFMA D -> MFMA D WAW (conservative)")
        elif c.kind in ("valu", "vmem", "ds"):
            if PW & (R | W): req(big, "MFMA D -> VALU/mem")
        if c.kind == "valu" and set(p.srcc) & set(c.w): req({4: 3, 8: 7}[p.passes], "MFMA SrcC read -> VALU write")
    if p.kind == "vmem" and getattr(p, "store", False) and len(getattr(p, "data", [])) >= 3:
        if set(p.data) & W: req(2 if c.kind == "valu" else 1, "wide store data WAR")
    return need, why

def check(tr, name=""):
    errs = []
    def err(i, j, msg):
        errs.append(f"{name}: {msg}\n     prod[{tr[j].idx}]: {tr[j].text}\n     cons[{tr[i].idx}]: {tr[i].text}")
    lg = []; vm = []
    for i, c in enumerate(tr):
        if c.op == "s_waitcnt":
            t = c.text
            m = re.search(r"vmcnt\((\d+)\)", t)
            if m:
                n = int(m.group(1));
                while len(vm) > n: vm.pop(0)
            m = re.search(r"lgkmcnt\((\d+)\)", t)
            if m:
                n = int(m.group(1))
                if n == 0: lg.clear()
                else:
                    ds = [j for j in lg if tr[j].kind == "ds"]
                    for j in ds[:max(0, len(ds) - n)]: lg.remove(j)
        touched = set(c.r) | set(c.w) | set(c.async_w)
        for q in (lg, vm):
            for j in q:
                if touched & set(tr[j].async_w) and not "@dyn" in c.raw:
                    err(i, j, "use of register with outstanding load")
        if c.kind == "ds" or (c.kind == "smem" and "@nowait" not in c.raw): lg.append(i)
        if c.kind == "vmem": vm.append(i)
        if len(vm) > 63: errs.append(f"{name}: vmcnt overflow at [{c.idx}] {c.text}"); vm.pop(0)
        if len(lg) > 13 and c.kind == "ds": errs.append(f"{name}: lgkmcnt overflow at [{c.idx}] {c.text}"); lg.pop(0)
        if c.op.startswith(("s_cselect", "s_cbranch_scc", "s_addc", "s_subb")):
            for j in range(i - 1, -1, -1):
                p = tr[j]
                if p.kind == "salu" and p.op.startswith(SCCW):
                    if c.op.startswith(("s_addc", "s_subb")): ok = "@bits" in c.raw or p.op.startswith(("s_add_u32", "s_sub_u32")) and p.w[0][1] + 1 == c.w[0][1]
                    else: ok = p.op.startswith(("s_cmp", "s_or_b64", "s_and_b64", "s_bitcmp")) or "@scc" in p.raw
                    if not ok: err(i, j, "suspicious SCC producer")
                    break
        dist = 0
        for j in range(i - 1, max(-1, i - 24), -1):
            p = tr[j]
            need, why = pair_need(p, c)
            if need > dist: err(i, j, f"{why}: need {need} have {dist}")
            dist += p.states
            if dist >= 20: break
    return errs

def estimate(tr):
    cyc = 0; gap = 0; last = None
    for c in tr:
        if c.kind == "mfma":
            if last is not None: cyc += max(last * 4, 8 + gap)
            else: cyc += gap
            last = c.passes; gap = 0
        else:
            gap += 8 if (c.kind == "valu" and c.trans) else 4 * c.states
    return cyc + gap

def resolve_vm(lines, take=()):
    labels = {}
    for i, l in enumerate(lines):
        s = l.split(";")[0].strip()
        if s.endswith(":"): labels[s[:-1]] = i
    loop_heads = {}
    for i, l in enumerate(lines):
        m = re.search(r"@loop (\d+)", l)
        if m: loop_heads[labels[l.split(";")[0].split()[-1]]] = i
    def ev(tag, it): return re.sub(r"\{([^}]*)\}", lambda m: str(eval(m.group(1).replace("~", " "), {"it": it})), tag)
    res = {}
    errs = []
    for phase in (0, 1):
        issued = []; retired = 0; retired_at_barrier = 0; nbar = 0
        last_use = {}
        pc = 0; it = 0; cnt = {}
        while pc < len(lines):
            l = lines[pc]; s = l.split(";")[0].strip(); cm = l.split(";", 1)[1] if ";" in l else ""
            if not s or s.endswith(":") or s.startswith("."):
                pc += 1; continue
            op = s.split()[0]
            if op.startswith(("buffer_", "global_")):
                m = re.search(r"@issue (\S+)", cm)
                issued.append(ev(m.group(1), it) if m else None)
                m = re.search(r"@over (\S+)", cm)
                if m and phase == 1:
                    t = ev(m.group(1), it)
                    if t in last_use and last_use[t] >= nbar: errs.append(f"DMA overwrites {t} without barrier: {l}")
            elif op == "s_waitcnt" and "vmcnt" in s:
                if "vmcnt(@)" in s:
                    if phase == 0:
                        need = set(ev(t, it) for t in re.search(r"@need (\S+)", cm).group(1).split("|"))
                        idx = [i for i, t in enumerate(issued) if t in need]
                        n = len(issued) - 1 - idx[-1] if idx else 63
                        res[pc] = min(res.get(pc, 63), n)
                        n = None
                    else: n = res[pc]
                else: n = int(re.search(r"vmcnt\((\d+)\)", s).group(1))
                if n is not None: retired = max(retired, len(issued) - n)
            elif op == "s_barrier":
                retired_at_barrier = retired; nbar += 1
            elif op.startswith("ds_read") and phase == 1:
                m = re.search(r"@use (\S+)", cm)
                if m:
                    t = ev(m.group(1), it); last_use[t] = nbar
                    idx = [i for i, x in enumerate(issued) if x == t]
                    if t == "DEAD": pass
                    elif not idx: errs.append(f"use of never-issued {t}: {l}")
                    elif idx[-1] >= retired_at_barrier: errs.append(f"use of {t} not covered by wait+barrier: {l}")
            if op == "s_endpgm": break
            if op.startswith(("s_cbranch", "s_branch")):
                tgt = labels[s.split()[-1]]
                if op == "s_branch": pc = tgt; continue
                m = re.search(r"@loop (\d+)", cm)
                if m:
                    c = cnt.get(pc, 0) + 1; cnt[pc] = c
                    if c < int(m.group(1)): it = c; pc = tgt; continue
                    it = 0
                m = re.search(r"@takeif (.*)$", cm)
                if m and eval(m.group(1), {"it": it, "take": take}): pc = tgt; continue
            pc += 1
    out = list(lines)
    for pc, n in res.items(): out[pc] = out[pc].replace("vmcnt(@)", f"vmcnt({n})")
    out = [l.replace("vmcnt(@)", "vmcnt(0)") for l in out]
    return out, errs
```

```python
from mkhead import *

def spin_code(k, label, load, cond, ret, extra=""):
    k(f"{label}:\ns_add_u32 s{sSpin}, s{sSpin}, 1\ns_cmp_gt_u32 s{sSpin}, 0x2000000\ns_cbranch_scc1 {label}_x")
    k(load); k("s_waitcnt vmcnt(0)"); k(cond); k(f"s_cbranch_vccnz {label}\n{label}_x:")
    if extra: k(extra)
    k(f"s_branch {ret}")

def gen_main(verbose=True):
    name = "main"
    L2M = OPT.get("l2m"); OST = OPT.get("ost", "nt") if L2M else "sc1"; PST = "sc1"
    PACE = int(OPT.get("pace", 40)); GFLAG = int(OPT.get("gflag", 212)); GPOLL = int(OPT.get("gpoll", 40))
    NM = int(OPT.get("nm", 2)); VSP = float(OPT.get("vsp", 4.5)); FP = OPT.get("finep")
    PST_ = 2621440 + int(OPT.get("pskew", 1024))
    SIM = int(OPT.get("sim", 1)) and not int(OPT.get("chain", 1)); CHH = int(OPT.get("chh", 1)); CHT = int(OPT.get("cht", 99))
    G6 = int(OPT.get("g6", 1))
    import re as _re
    def rebank(lines, bank):
        if not bank: return lines
        f = lambda m: f"a[{int(m.group(1))+32}:{int(m.group(2))+32}]" if 192 <= int(m.group(1)) < 216 else m.group(0)
        return [_re.sub(r"a\[(\d+):(\d+)\]", f, l) for l in lines]
    g0p = lambda f: 8 * (f >> 1); g1p = lambda f: 8 * (f >> 1) + 8
    WSR = f"s[{sWS}:{sWS+3}]"; FAKE = OPT.get("fake", "")
    k = Kernel(NAME + "_kernel", 256, 256, SPARE + 16384, 512, 256, sgprs=102)
    k(f"s_cmp_ge_u32 s2, 256\ns_cbranch_scc1 {name}_end")
    k("s_load_dwordx16 s[64:79], s[0:1], 0\ns_load_dwordx4 s[80:83], s[0:1], 64\ns_load_dwordx2 s[84:85], s[0:1], 80\ns_load_dwordx2 s[86:87], s[0:1], 96")
    CT = OPT.get("ct", "few")
    if CT == "all": k(f"v_lshlrev_b32 v{vK[1]}, 7, v0")
    else: k(f"s_lshr_b32 s{sTmp}, s2, 3\ns_lshl_b32 s{sTmp}, s{sTmp}, 10\nv_lshrrev_b32 v{vK[1]}, 5, v0\nv_lshlrev_b32 v{vK[1]}, 7, v{vK[1]}\nv_add_u32 v{vK[1]}, s{sTmp}, v{vK[1]}")
    k(f"s_getpc_b64 s[88:89]\nglobal_load_dword a220, v{vK[1]}, s[88:89]\nv_lshrrev_b32 v{vK[1]}, 6, v0\nv_lshlrev_b32 v{vK[1]}, 12, v{vK[1]}\nv_and_b32 v{vL}, 63, v0\nv_lshl_add_u32 v{vK[1]}, v{vL}, 4, v{vK[1]}")
    k(f"v_and_b32 v{vL}, 63, v0\nv_lshrrev_b32 v{vC}, 6, v0\nv_mov_b32 v{vK[0]}, v0\nv_readfirstlane_b32 s{sW}, v{vC}")
    if FP: k(".stamp 9")
    k(f"s_and_b32 s{sGrp}, s2, 7\ns_lshr_b32 s{sQt}, s2, 5\ns_bfe_u32 s{sJ}, s2, 0x20003\ns_lshl_b32 s{sHead}, s{sGrp}, 2\ns_add_u32 s{sHead}, s{sHead}, s{sJ}")
    LR, LC, LX, LS = 240, 241, 242, 243
    k(f"s_lshl_b32 s{sB}, s2, 3\ns_lshl_b32 s{sTmp}, s{sW}, 1\ns_add_u32 s{sB}, s{sB}, s{sTmp}\nv_bfe_u32 v{LR}, v{vL}, 2, 1\nv_add_u32 v{LR}, s{sB}, v{LR}")
    k(f"v_lshrrev_b32 v{LC}, 3, v{vL}\nv_lshlrev_b32 v{LC}, 6, v{LC}\nv_and_b32 v{vC}, 3, v{vL}\nv_lshl_add_u32 v{LC}, v{vC}, 4, v{LC}")
    k(f"v_mul_u32_u24 v{LX}, 1280, v{LR}\nv_add_u32 v{LX}, v{LX}, v{LC}")
    dma_chunk_tr(k, vVB, vL, vC); wrow(k, vKB, vL, vC)
    k(f"v_mul_u32_u24 v{vGA}, 12288, v{vKB}\nv_add_u32 v{vGA}, v{vGA}, v{vVB}\nv_add_u32 v{vGB}, {16*12288}, v{vGA}")
    k(f"s_lshl_b32 s{sQ64}, s{sQt}, 2\ns_add_u32 s{sQ64}, s{sQ64}, s{sW}\ns_mul_i32 s{sWoff}, s{sW}, 6144")
    k(f"s_lshr_b32 s{sA}, s{sW}, 1\ns_lshl_b32 s{sA}, s{sA}, 5\ns_and_b32 s{sTmp}, s{sW}, 1\ns_lshl_b32 s{sTmp}, s{sTmp}, 2\ns_add_u32 s{sA}, s{sA}, s{sTmp}")
    ROT = int(OPT.get("rot", 2)); sRot = 100 if False else 83
    k(f"s_mul_i32 s{sGo}, s{sA}, 12288\ns_mov_b32 s{sGs}, {64*12288}")
    tbl = {0: 0, 2: 0x5050, 4: 0x7520}[ROT]
    k(f"s_add_u32 s{sIt}, s{sJ}, s{sQt}\ns_and_b32 s{sIt}, s{sIt}, 3\ns_lshl_b32 s{sIt}, s{sIt}, 2\ns_lshr_b32 s{sIt}, {tbl:#x}, s{sIt}\ns_and_b32 s{sIt}, s{sIt}, 15")
    k(f"s_mul_i32 s{sTmp}, s{sIt}, {64*12288}\ns_add_u32 s{sGo}, s{sGo}, s{sTmp}\ns_lshl_b32 s{sIt}, s{sIt}, 13")
    wadv = f"s_add_u32 s{sGo}, s{sGo}, s{sGs}\ns_sub_u32 s{sOo}, s{sGo}, {640*12288}\ns_min_u32 s{sGo}, s{sGo}, s{sOo}"
    xoff = lambda n: f"s_add_u32 s{sXo}, s{sIt}, {n*4096}\ns_sub_u32 s{sFb}, s{sXo}, 81920\ns_min_u32 s{sXo}, s{sXo}, s{sFb}"
    PF = OPT.get("pf", "")
    k(f"s_lshr_b32 s{sTmp}, s2, 3\ns_lshl_b32 s{sTmp}, s{sTmp}, 8\nv_add_u32 v22, s{sTmp}, v{vK[0]}\ns_mov_b32 s{sTmp}, {(2**32 + 11)//12}\nv_mul_hi_u32 v23, s{sTmp}, v22\nv_mul_u32_u24 v24, 12, v23\nv_sub_u32 v24, v22, v24")
    k(f"v_mul_u32_u24 v23, 12288, v23\nv_lshl_add_u32 v23, v24, 7, v23\ns_mul_i32 s{sVo}, s{sJ}, 384\ns_sub_u32 s{sVo}, {int(OPT.get('wt0', 128))*12288}, s{sVo}")
    k(f"v_lshlrev_b32 v24, 7, v{vL}\ns_mul_i32 s{sM}, s{sHead}, 786432\ns_add_u32 s{sM}, s{sM}, 589824\ns_lshl_b32 s{sRd}, s{sQt}, 13")
    k(f"s_mul_i32 s{sTmp}, s{sHead}, 384\ns_sub_u32 s{sTmp2}, 7864320, s{sTmp}")
    k("s_waitcnt lgkmcnt(0)")
    if FP: k(".stamp 9")
    srd_off(k, sK, pX, None, 2621440); srd_off(k, sV, pWR, None, 1280)
    XR, WR, F = 64, 76, 96
    k(f"buffer_load_dwordx4 {q('v',XR)}, v{LX}, s[{sK}:{sK+3}], 0 offen\nbuffer_load_dwordx4 {q('v',XR+4)}, v{LX}, s[{sK}:{sK+3}], 0 offen offset:512")
    k(f"buffer_load_dwordx4 {q('v',XR+8)}, v{LX}, s[{sK}:{sK+3}], 0 offen offset:1024")
    k(f"v_mov_b32 v25, {EPOCH}\nglobal_load_dword v26, v25, s[{pWS}:{pWS+1}] sc1")
    if int(OPT.get("wf", 1)):
        k(f"s_lshr_b32 s{sRt}, s2, 3\ns_lshl_b32 s{sRt}, s{sRt}, 7\ns_add_u32 s{sRt}, s{sRt}, {LNF}\ns_load_dword s28, s[{pWS}:{pWS+1}], s{sRt} glc")
    for i in range(3): k(f"buffer_load_dwordx4 {q('v',WR+4*i)}, v{LC}, s[{sV}:{sV+3}], 0 offen offset:{512*i}")
    srd_off(k, sG, pWQ, f"s{sTmp}", f"s{sTmp2}")
    def wnow(p):
        dma_now(k, sG, sGo, vGA, vGB, sWoff, ((p + 2) % 6) * SLOT, f"W{p}")
        k(wadv)
    W_PRE = int(OPT.get("wpre", 1)); W_ALL = int(OPT.get("wall", 4))
    if W_PRE: wnow(0)
    if "w" in PF: k(f"buffer_load_dword a221, v23, s[{sG}:{sG+3}], s{sVo} offen")
    for p in range(1, W_PRE): wnow(p)
    if "k" in PF:
        k(f"s_cmp_eq_u32 s{sW}, 0\ns_cselect_b32 s{sF1}, s{pK}, s{pV}\ns_cselect_b32 s{sF1+1}, s{pK+1}, s{pV+1}\ns_add_u32 s{sF1}, s{sF1}, s{sM}\ns_addc_u32 s{sF1+1}, s{sF1+1}, 0\ns_and_b32 s{sF1+1}, s{sF1+1}, 0xffff")
        k(f"s_cmp_lt_u32 s{sW}, 2\ns_cselect_b32 s{sF1+2}, 196608, 0\ns_mov_b32 s{sF1+3}, 0x00020000\nbuffer_load_dword a222, v24, s[{sF1}:{sF1+3}], s{sRd} offen")
    srd_off(k, sWS, pWS, None, WS_SIZE)
    k(f"v_lshrrev_b32 v{LS}, 6, v{LR}\nv_mul_u32_u24 v{LS}, 81920, v{LS}\nv_bfe_u32 v{vC}, v{LR}, 4, 2\nv_lshl_add_u32 v{LS}, v{vC}, 10, v{LS}\nv_and_b32 v{vC}, 15, v{LR}\nv_lshl_add_u32 v{LS}, v{vC}, 6, v{LS}")
    k(f"v_lshrrev_b32 v{vC}, 3, v{vL}\nv_lshl_add_u32 v{LS}, v{vC}, 12, v{LS}\nv_and_b32 v{vC}, 3, v{vL}\nv_lshl_add_u32 v{LS}, v{vC}, 4, v{LS}")
    k(f"s_mov_b32 s{sKo}, {fbits(1.0/640):#x}\ns_mov_b32 s{sKs}, {fbits(1e-5):#x}\ns_mov_b32 s{sR[0]}, {XNF}\ns_mov_b32 s{sR[1]}, {XNF+32768}\ns_mov_b32 s{sR[2]}, {XNF+65536}")
    if OPT.get("pre"):
        for i in range(int(OPT["pre"])): k(f"buffer_load_dword a{222+(i&1)}, v{LS}, {WSR}, s{sR[i]} offen")
    tr_addr(k, vTb[0], vL, vC, 3072, 0)
    for qd in range(1, 4): k(f"v_xor_b32 v{vTb[qd]}, {qd*32}, v{vTb[0]}")
    for qd in range(4): k(f"v_add_u32 v{vT[qd]}, {2*SLOT}, v{vTb[qd]}")
    k(f"v_and_b32 v{vX}, 15, v{vL}\nv_lshlrev_b32 v{vX}, 6, v{vX}\nv_lshrrev_b32 v{vC}, 4, v{vL}\nv_lshl_add_u32 v{vX}, v{vC}, 4, v{vX}")
    k(f"s_mul_i32 s{sTmp}, s{sQ64}, 81920\ns_add_u32 s{sTmp}, s{sTmp}, {XNF}")
    srd_off(k, sXN, pWS if "x" not in FAKE else pX, f"s{sTmp}", 81920)
    if "x" in FAKE:
        for n in range(int(OPT.get("xpre", 2))):
            k(xoff(n))
            for sub in range(4): k(f"buffer_load_dwordx4 a[{16*n+4*sub}:{16*n+4*sub+3}], v{vX}, s[{sXN}:{sXN+3}], s{sXo} offen offset:{sub*1024} ; @issue X{n}")
    k(f"s_lshl_b32 s{sXo}, s{sQ64}, 7\ns_add_u32 s{sXo}, s{sXo}, {LNF}\ns_mov_b32 s{sSpin}, 0")
    LREP = int(OPT.get("lrep", 1))
    if LREP: k(f"s_lshl_b32 s{sTmp}, s{sGrp}, 12\ns_add_u32 s{sXo}, s{sXo}, s{sTmp}\ns_load_dword s31, s[{pWS}:{pWS+1}], s{sXo} glc")
    k(f"s_lshr_b32 s{sTo}, s2, 3\ns_lshl_b32 s{sTo}, s{sTo}, 7\ns_lshl_b32 s{sTmp}, s{sGrp}, 2\ns_add_u32 s{sTo}, s{sTo}, s{sTmp}\ns_add_u32 s{sTo}, s{sTo}, {LNF}\ns_cmp_eq_u32 s{sW}, 0\ns_cselect_b32 s{sTo}, s{sTo}, 0x70000000\nv_lshlrev_b32 v20, 12, v{vL}")
    if FP: k(".stamp 9")
    if "z" in FAKE:
        for p in range(W_PRE, W_ALL): wnow(p)
        k(f"s_waitcnt lgkmcnt(0)\ns_lshr_b32 s{sTag}, s{sTag}, 4\ns_mul_i32 s{sTag}, s{sTag}, 0x2c9277b5\ns_add_u32 s{sTag}, s{sTag}, 0x6c564b05\ns_lshl_b32 s{sTag}, s{sTag}, 4\ns_branch z_skip")
    k("s_waitcnt vmcnt(@)")
    if FP: k(".stamp 9")
    LO = "s_mov_b32 exec_hi, 0"; ALL = "s_mov_b64 exec, -1"
    A0, A1, T0 = 120, 122, 124
    def red(r):
        for st in ("quad_perm:[1,0,3,2]", "quad_perm:[2,3,0,1]", "row_ror:8"):
            k(f"s_nop 1\nv_add_f32_dpp v{r}, v{r}, v{r} {st} row_mask:0xf bank_mask:0xf")
        xgroup_reduce(k, r, T0, "v_add_f32")
    P = lambda r: f"v[{r}:{r+1}]"
    for i in range(12): k(f"v_lshlrev_b32 v{F+2*i}, 16, v{XR+i}\nv_and_b32 v{F+2*i+1}, 0xffff0000, v{XR+i}")
    k(f"v_pk_add_f32 {P(A0)}, {P(F)}, {P(F+2)}\nv_pk_add_f32 {P(A1)}, {P(F+4)}, {P(F+6)}")
    for i in range(4, 12):
        if i == 8: k(LO)
        a = (A0, A1)[i % 2]; k(f"v_pk_add_f32 {P(a)}, {P(a)}, {P(F+2*i)}")
    k(ALL); k(f"v_pk_add_f32 {P(A0)}, {P(A0)}, {P(A1)}\nv_add_f32 v{A0}, v{A0}, v{A0+1}")
    red(A0)
    MN, NM_, VR = 126, 128, 130
    k(f"v_mul_f32 v{MN}, s{sKo}, v{A0}\nv_mul_f32 v{NM_}, s{sKo}, -v{A0}\nv_mul_f32 v{NM_+1}, s{sKo}, -v{A0}")
    for i in range(12):
        if i == 8: k(LO)
        a = (A0, A1)[i % 2]; t = 132 + 2 * (i % 4)
        k(f"v_pk_add_f32 {P(t)}, {P(F+2*i)}, {P(NM_)}")
        k(f"v_pk_mul_f32 {P(a)}, {P(t)}, {P(t)}" if i < 2 else f"v_pk_fma_f32 {P(a)}, {P(t)}, {P(t)}, {P(a)}")
    k(ALL); k(f"v_pk_add_f32 {P(A0)}, {P(A0)}, {P(A1)}\nv_add_f32 v{A0}, v{A0}, v{A0+1}")
    red(A0)
    k(f"v_mul_f32 v{VR}, s{sKo}, v{A0}")
    round_bf16(k, MN, MN); round_bf16(k, VR, VR)
    k(f"v_add_f32 v{VR}, s{sKs}, v{VR}"); round_bf16(k, VR, VR)
    k(f"v_sqrt_f32 v{VR}, v{VR}\nv_sub_f32 v{NM_}, 0, v{MN}"); round_bf16(k, VR, VR)
    k(f"v_rcp_f32 v{MN+1}, v{VR}\nv_sub_f32 v{NM_+1}, 0, v{MN}")
    k(f"v_mul_f32 v{A0}, {fbits(CSC):#x}, v{MN+1}\nv_mul_f32 v{A0+1}, {fbits(CSC):#x}, v{MN+1}\nv_mov_b32 v{VR}, v{MN+1}\nv_mov_b32 v{VR+1}, v{MN+1}")
    XS = 144
    for i in range(12):
        t = 132 + 2 * (i % 4)
        k(f"v_pk_add_f32 {P(F+2*i)}, {P(F+2*i)}, {P(NM_)}\nv_pk_mul_f32 {P(t)}, {P(F+2*i)}, {P(A0)}\nv_cvt_pk_bf16_f32 v{XS+i}, v{t}, v{t+1}")
        if i == 11: k(LO)
        if i % 4 == 3: k(f"buffer_store_dwordx4 {q('v',XS+i-3)}, v{LS}, {WSR}, s{sR[i//4]} offen sc1")
    k(ALL)
    if FP: k(".stamp 9")
    k("s_waitcnt vmcnt(@)")
    k(f"v_readfirstlane_b32 s{sTag}, v26")
    if "l" in PF: k(f"buffer_load_dword a221, v23, s[{sG}:{sG+3}], s{sVo} offen")
    D = []
    for p in range(W_PRE, W_ALL):
        dl_ = dma_lines(sG, sGo, vGA, vGB, sWoff, ((p + 2) % 6) * SLOT, f"W{p}")
        D += [list(x) for x in dl_]; D[-1].append(wadv)
    def dma_pop(n=1):
        for _ in range(n):
            if D:
                d = D.pop(0); k(d[0]); k("s_nop 0"); [k(x) for x in d[1:]]
    for i in range(12):
        if i == 8: k(LO)
        f = F + 2 * i; t = 132 + 2 * (i % 4); a = (A0, A1)[i % 2]
        k(f"v_cvt_pk_bf16_f32 v{XR+i}, v{f}, v{f+1}\nv_lshlrev_b32 v{f}, 16, v{XR+i}\nv_and_b32 v{f+1}, 0xffff0000, v{XR+i}\nv_pk_mul_f32 {P(f)}, {P(f)}, {P(VR)}")
        k(f"v_cvt_pk_bf16_f32 v{XR+i}, v{f}, v{f+1}\nv_lshlrev_b32 v{f}, 16, v{XR+i}\nv_and_b32 v{f+1}, 0xffff0000, v{XR+i}")
        k(f"v_lshlrev_b32 v{t}, 16, v{WR+i}\nv_and_b32 v{t+1}, 0xffff0000, v{WR+i}")
        k(f"v_pk_mul_f32 {P(a)}, {P(f)}, {P(t)}" if i < 2 else f"v_pk_fma_f32 {P(a)}, {P(f)}, {P(t)}, {P(a)}")
        if i < 8: dma_pop(int(OPT.get("dpop", 2)))
        if i == int(OPT.get("lnf", 4)):
            k(("s_waitcnt lgkmcnt(0)" if "l" in FAKE else "s_waitcnt vmcnt(@) lgkmcnt(0) ; @need LST") + f"\ns_lshr_b32 s{sTag}, s{sTag}, 4\ns_mul_i32 s{sTag}, s{sTag}, 0x2c9277b5\ns_add_u32 s{sTag}, s{sTag}, 0x6c564b05\ns_lshl_b32 s{sTag}, s{sTag}, 4\n{'s_nop 0' if 'l' in FAKE else 's_barrier'}\nv_mov_b32 v21, s{sTag}\ns_mov_b64 exec, {0xff if LREP else 1}\nbuffer_store_dword v21, v20, {WSR}, s{sTo} offen sc1\ns_mov_b64 exec, 0x11\nv_lshlrev_b32 v{vC}, 3, v{LR}\ns_mov_b32 s{sTmp}, {STATS}\nbuffer_store_dwordx2 {P(MN)}, v{vC}, {WSR}, s{sTmp} offen sc1 ; @issue STA\n{ALL}")
    k(ALL); k(f"v_pk_add_f32 {P(A0)}, {P(A0)}, {P(A1)}\nv_add_f32 v{A0}, v{A0}, v{A0+1}")
    red(A0)
    round_bf16(k, A0, A0)
    k(f"v_ashrrev_i32 v{A1}, 31, v{A0}\nv_or_b32 v{A1}, 0x80000000, v{A1}\nv_xor_b32 v{A0}, v{A0}, v{A1}\nv_and_b32 v{A0}, 0xffff0000, v{A0}\nv_sub_u32 v{A1}, 2047, v{LR}\nv_or_b32 v{A0}, v{A0}, v{A1}")
    k(f"s_nop 1\nv_mov_b32_dpp v{A0+1}, v{A0} row_ror:4 row_mask:0xf bank_mask:0xf\nv_mov_b32 v{A0+2}, s{sTag}\nv_mov_b32 v{A0+3}, s{sTag}")
    k(f"s_lshl_b32 s{sTmp}, s2, 2\ns_add_u32 s{sTmp}, s{sTmp}, s{sW}\ns_lshl_b32 s{sTmp}, s{sTmp}, 4\ns_add_u32 s{sTmp}, s{sTmp}, {RECS}\nv_mov_b32 v{vC}, 0\ns_mov_b64 exec, 1")
    if FP: k(".stamp 9")
    k(f"s_waitcnt vmcnt(@)\nbuffer_store_dwordx4 {q('v',A0)}, v{vC}, {WSR}, s{sTmp} offen sc1"); k(ALL)
    if FP: k(".stamp 9")
    dma_pop(100)
    k("spin_ln:")
    if int(OPT.get("lnsleep", 0)): k(f"s_sleep {OPT['lnsleep']}")
    k(f"s_load_dwordx8 s[28:35], s[{pWS}:{pWS+1}], s{sXo} glc\ns_add_u32 s{sSpin}, s{sSpin}, 1\ns_cmp_gt_u32 s{sSpin}, 0x2000000\ns_cselect_b32 s{sTmp2}, 0, -1\ns_waitcnt lgkmcnt(0)")
    k(f"s_xor_b32 s{sTmp}, s28, s{sTag}")
    for i in range(1, 8): k(f"s_xor_b32 s{28+i}, s{28+i}, s{sTag}\ns_or_b32 s{sTmp}, s{sTmp}, s{28+i}")
    k(f"s_and_b32 s{sTmp}, s{sTmp}, s{sTmp2} ; @scc" + ("" if "l" in FAKE else "\ns_cbranch_scc1 spin_ln"))
    if FP: k(".stamp 9")
    k("z_skip:")
    def Xreg(n, sub): return q("a", (224 + 16 * (n - 18) if n >= 18 else 16 * (n % 12)) + 4 * sub)
    def xload(n, so): return [f"buffer_load_dwordx4 {Xreg(n, sub)}, v{vX}, s[{sXN}:{sXN+3}], {so} offen offset:{sub*1024} sc1 ; @issue X{n}" for sub in range(4)]
    XPRE = int(OPT.get("xpre", 2))
    for n in range(XPRE if "x" not in FAKE else 0):
        k(xoff(n))
        for l in xload(n, f"s{sXo}"): k(l)
    k("s_waitcnt vmcnt(@) ; @need W0\ns_barrier")
    nat = [(ks, dt) for ks in range(2) for dt in range(12)]
    order9 = nat[:4] + [(1, dt) for dt in range(4)] + [(ks, dt) for i in (2, 3, 4, 5) for ks in range(2) for dt in (2 * i, 2 * i + 1)]
    HF = [(p, ks, dt) for p in range(9) for (ks, dt) in nat] + [(9, ks, dt) for (ks, dt) in order9]
    TM = int(OPT.get("tm", 3))
    if TM > 2:
        steps = [(n >> 1, n & 1) for n in range(20)]
        HF = [(p, ks, dt) for (p, ks) in steps[:20 - TM] for dt in range(12)] + [(p, ks, 2 * i + b_) for i in range(6) for (p, ks) in steps[20 - TM:] for b_ in range(2)]
    if CHH < 10:
        TM = int(OPT.get("tm", 2)); assert TM in (2, 4)
        HF = [(p, ks, dt) for p in range(CHH) for (ks, dt) in nat] + [(p, ks, dt) for p in range(CHH, 10 - TM // 2) for dt in range(12) for ks in range(2)]
        HF += [(p, ks, dt) for dt in range(12) for p in range(10 - TM // 2, 10) for ks in range(2)]
    rds = [rd_tr(n, dt, ks, f"W{p}", extra=(SLOT if (TM > 2 and p == 9) else 0)) for n, (p, ks, dt) in enumerate(HF)] + S_reads(0, 240, "K0", first=True) + S_reads(1, 252, "K0") + (S_reads(0, 264, "K1")[:AHEAD] if not G6 else [])
    first_reads(k, rds)
    k(".stamp 0")
    k("s_waitcnt vmcnt(@) ; @need X0")
    k("head_code:")
    BARG = 96 - 4 * AHEAD - 2
    M = []
    for n, (p, ks, dt) in enumerate(HF):
        for sub in subs(n):
            d = q("v", oct_(dt >> 1, sub) + 4 * (dt & 1))
            M.append(f"{MF} {d}, {afrag(n)}, {Xreg(2*p+ks, sub)}, {d} #0")
    H9 = 864
    done_at = {}
    for n, (p, ks, dt) in enumerate(HF): done_at[dt >> 1] = g1p(n) - 1
    M = init_c(reorder(M)) + S_mfmas(0, 240, zero_c=True) + S_mfmas(1, 252)
    R = Region(M, name="head")
    place_reads(R, rds, 264)
    if G6:
        for n, r_ in enumerate(S_reads(0, 0, "K1")[:6]): R.fix(1040 + 2 * n, rebank(r_, 1)[0])
        for it_ in R.fixed[1047]:
            if "lgkm" in it_.text: it_.text = "s_waitcnt lgkmcnt(4)"
        R.fix(1055, "s_waitcnt lgkmcnt(0)", end=True)
    vtl = []
    for p in range(1, 10 if TM <= 2 else 9):
        for qd in range(4):
            lu = max(n for n in range(24 * p) if HF[n][2] & 3 == qd); fi = min(n for n in range(24 * p, 240) if HF[n][2] & 3 == qd)
            vtl.append(R.add(f"v_add_u32 v{vT[qd]}, {((p+2)%6)*SLOT}, v{vTb[qd]}", earliest=4 * (lu - AHEAD) + 2, latest=4 * (fi - AHEAD) - 1))
    for p in range(8): barrier_at(R, 96 * p + BARG, f"W{p+1}" + ("|FW" + ("|W9" if TM == 4 else "") if p == 7 else ""))
    if TM != 4: barrier_at(R, (4 * (min(n for n, x in enumerate(HF) if x[0] == 9) - AHEAD) - 2) // 4 * 4 + 2, "W9")
    barrier_at(R, H9 + BARG, "K0"); barrier_at(R, H9 + 96 + BARG, "K1|V0")
    for n in range(1, 20):
        fu = min(i for i, (p, ks, dt) in enumerate(HF) if 2 * p + ks == n)
        R.fix(g0p(fu) - 3, f"s_waitcnt vmcnt(@) ; @need X{n}")
    L = Lines()
    FA0, FA1 = 56, 57
    L(f"v_mul_u32_u24 v{FA0}, 3072, v{vKB}\nv_add_u32 v{FA0}, v{FA0}, v{vVB}\nv_add_u32 v{FA1}, {16*3072}, v{FA0}")
    L(f"v_lshrrev_b32 v{vC}, 3, v{vL}\nv_mul_u32_u24 v62, 1280, v{vC}\nv_add_u32 v62, v62, v{vVB}\nv_add_u32 v63, {8*1280}, v62")
    L(f"v_mul_u32_u24 v{vC3}, 384, v{vC}\nv_add_u32 v{vVA}, v{vC3}, v{vVB}\nv_add_u32 v{vVB}, 3072, v{vVA}")
    L(f"v_bfe_u32 v{vC}, v{vL}, 4, 1\nv_bfe_u32 v{vC2}, v{vL}, 5, 1\nv_lshl_add_u32 v{vC}, v{vC}, 1, v{vC2}")
    L(f"v_and_b32 v{vC2}, 7, v{vL}\nv_xor_b32 v{vC2}, v{vC2}, v{vC}\nv_lshl_add_u32 v{vKA}, v{vC2}, 4, v{vC3}")
    L(f"v_xor_b32 v{vC2}, 4, v{vC2}\nv_lshl_add_u32 v{vKB}, v{vC2}, 4, v{vC3}\nv_add_u32 v{vKB}, 3072, v{vKB}")
    L(f"v_bfe_u32 v{vC2}, v{vL}, 1, 1\nv_bfe_u32 v{vC3}, v{vL}, 2, 1\nv_lshl_add_u32 v{vC2}, v{vC2}, 1, v{vC3}")
    L(f"v_bfe_u32 v{vC3}, v{vL}, 3, 1\nv_lshl_add_u32 v{vC2}, v{vC3}, 2, v{vC2}\nv_xor_b32 v{vC2}, v{vC2}, v{vC}\nv_lshlrev_b32 v{vC2}, 4, v{vC2}")
    L(f"v_mul_u32_u24 v{vC3}, 3072, v{vC3}\nv_and_b32 v{vC}, 7, v{vL}\nv_lshl_add_u32 v{vC3}, v{vC}, 7, v{vC3}\nv_subrev_u32 v{vC3}, s{sWoff}, v{vC3}")
    L(f"v_add_u32 v{vKb[0]}, v{vC3}, v{vC2}\nv_xor_b32 v{vC2}, 64, v{vC2}\nv_add_u32 v{vKb[1]}, v{vC3}, v{vC2}")
    L(f"s_mul_i32 s{sTmp}, s{sHead}, 786432\ns_add_u32 s{sTmp}, s{sTmp}, 589824")
    srd_off(L, sK, pK, f"s{sTmp}", 196608); srd_off(L, sV, pV, f"s{sTmp}", 196608)
    srd_off(L, sF1, pG, None, 1966080); srd_off(L, sF2, pU, None, 1966080)
    L(f"s_min_u32 s{sJob}, s2, 239\ns_mul_hi_u32 s{sTmp}, s{sJob}, {(2**32 + 23)//24}\ns_mul_i32 s{sTmp2}, s{sTmp}, 24\ns_sub_u32 s{sTmp2}, s{sJob}, s{sTmp2}")
    L(f"s_lshl_b32 s{sB}, s{sTmp}, 6\ns_add_u32 s{sB}, s{sB}, s{sA}\ns_mul_i32 s{sB}, s{sB}, 3072\ns_lshl_b32 s{sRt}, s{sTmp2}, 7\ns_add_u32 s{sB}, s{sB}, s{sRt}")
    L(f"s_lshl_b32 s{sFo}, s{sTmp}, 7")
    L(f"s_mul_i32 s{sFo2}, s{sTmp}, 1536\ns_lshl_b32 s{sRt}, s{sTmp2}, 6\ns_add_u32 s{sFo2}, s{sFo2}, s{sRt}\ns_lshl_b32 s{sRt}, s{sW}, 4\ns_add_u32 s{sFo2}, s{sFo2}, s{sRt}\ns_lshl_b32 s{sFo2}, s{sFo2}, 4\ns_add_u32 s{sFo2}, s{sFo2}, {GU}")
    L(f"s_lshl_b32 s{sFl}, s2, 8\ns_lshl_b32 s{sRt}, s{sW}, 2\ns_add_u32 s{sFl}, s{sFl}, s{sRt}\ns_add_u32 s{sFl}, s{sFl}, {FLAGS}")
    L(f"s_lshl_b32 s{sFb}, s{sQt}, 3\ns_add_u32 s{sFb}, s{sFb}, s{sGrp}\ns_lshl_b32 s{sFb}, s{sFb}, 2\ns_add_u32 s{sFb}, s{sFb}, s{sW}\ns_lshl_b32 s{sFb}, s{sFb}, 7\ns_add_u32 s{sFb}, s{sFb}, {OFL}\ns_lshl_b32 s{sXid}, s{sJ}, 2\ns_add_u32 s{sXid}, s{sXid}, s{sFb}")
    L(f"s_mov_b32 s{sNL}, {fbits(-LOG2E):#x}\ns_mov_b32 s{sIC}, {fbits(1.0/CSC):#x}\ns_lshl_b32 s{sRt}, s{sW}, 12\ns_mov_b32 s{sKo}, s{sWoff}\ns_mov_b32 s{sVo}, s{sWoff}\ns_mov_b32 s{sKs}, {SLOT}\ns_mov_b32 s{sM}, {RECS}\ns_mov_b32 s88, 0xaaaaaaaa\ns_mov_b32 s89, 0xaaaaaaaa")
    def glue_addc(lines):
        out = []
        for l in lines:
            if l.startswith("s_addc"): out[-1] += "\n" + l
            else: out.append(l)
        return out
    su = seq_items(R, glue_addc(L.l), 8)
    if int(OPT.get("ht", 0)):
        L = Lines()
        L(f"s_lshl_b32 s{sRd}, s{sQ64}, 11\nv_min_u32 v22, 15, v{vL}\nv_lshlrev_b32 v22, 7, v22")
        t1 = seq_items(R, L.l, 150, deps=[su])
        t1 = R.add(f"buffer_load_dword a217, v22, s[{sK}:{sK+3}], s{sRd} offen", earliest=int(OPT.get("htk", 200)), deps=[t1])
        t1 = R.add(f"buffer_load_dword a218, v22, s[{sV}:{sV+3}], s{sRd} offen", earliest=int(OPT.get("htk", 200)) + 10, deps=[t1])
        t1 = R.add(f"v_cndmask_b32 v22, v{FA0}, v{FA1}, s[88:89]", earliest=290, deps=[t1])
        t1 = R.add(f"buffer_load_dword a219, v22, s[{sF1}:{sF1+3}], s{sB} offen", earliest=int(OPT.get("htf", 300)), deps=[t1])
        t1 = R.add(f"buffer_load_dword a216, v22, s[{sF2}:{sF2+3}], s{sB} offen", earliest=int(OPT.get("htf", 300)) + 10, deps=[t1], latest=350)
    sPFl = 67
    t0_ = seq_items(R, [f"s_lshl_b32 s{sPFl}, s2, 2", f"s_add_u32 s{sPFl}, s{sPFl}, s{sW}", f"s_lshl_b32 s{sPFl}, s{sPFl}, 7", f"s_add_u32 s{sPFl}, s{sPFl}, {PFL}", "v_mov_b32 v23, 0",
                        f"buffer_load_dword a218, v23, {WSR}, s{sPFl} offen sc1"], 180, deps=[su], latest=340)
    if int(OPT.get("wf", 1)):
        seq_items(R, [f"s_sub_u32 s{sTmp}, s{sFb}, s{sFl}", f"s_sub_u32 s{sTmp}, s{sTmp}, 128", f"v_and_b32 v22, 1, v{vL}", f"v_mul_lo_u32 v22, v22, s{sTmp}",
                      f"buffer_load_dword a217, v22, {WSR}, s{sFl} offen offset:128 sc1"], 190, deps=[su], latest=340)
    VH = float(OPT.get("vh", 6.5))
    ST = [(f"W{p}", sG, sGo, vGA, vGB, f"s{sGs}") for p in range(10)] + [(f"K{i}", sK, sKo, vKA, vKB, str(SLOT)) for i in range(3)] + [(f"V{i}", sV, sVo, vVA, vVB, str(SLOT)) for i in range(2)]
    stream = []; xn = XPRE; wn = W_ALL
    for _ in range(int(OPT.get("wlead0", 0))): stream.append(("W", wn)); wn += 1
    for _ in range(int(OPT.get("xlead", 5))): stream.append(("X", xn)); xn += 1
    XPW = int(OPT.get("xpw", 2))
    while xn < 20 or wn < 15:
        if wn < 15 and (wn < 10 or xn >= 20 or (XPW == 2 and wn < int(OPT.get('kx', 10)))): stream.append(("W", wn)); wn += 1
        for _ in range(XPW):
            if xn < 20: stream.append(("X", xn)); xn += 1
    cur = 2.0; wprev = []; xprev = []; fw = None
    stream.reverse()
    while stream:
        it_ = ("FW",) if (fw is None and cur >= int(OPT.get('fwg', 96 * 5 + BARG - 20))) else stream.pop()
        if it_[0] == "W":
            idx = it_[1]
            if OPT.get("kvl", "1") != "0": idx = {12: 13, 13: 12}.get(idx, idx)
            tag, srd_, so, va, vb, adv = ST[idx]
            if idx >= 6: cur = max(cur, 96 * (idx - 6) + BARG + 2)
            if OPT.get("kvl", "1") != "0": cur = max(cur, {12: int(OPT.get("k2g", 944)), 14: int(OPT.get("v1g", 990))}.get(idx, 0))
            gaps = [int(cur + VH * i) for i in range(6)]; cur += 6 * VH
            ld = dma_sched(R, gaps, srd_, so, va, vb, sWoff, ((idx + 2) % 6) * SLOT, tag, over=(f"W{idx-6}" if idx >= 6 else None), deps=wprev + ([su] if idx >= 10 else []))
            wprev = [(R.chain(wadv.split("\n") if idx < 10 else [f"s_add_u32 s{so}, s{so}, {adv}"], earliest=gaps[-1], prio=-500, deps=[(ld, 0)])[-1], 0)]
            if idx == 9: w9done = wprev[0][0]
        elif it_[0] == "FW":
            cur = max(cur, 96 * 5 + BARG + 2)
            L = Lines()
            for ab in range(2):
                for mat in range(2):
                    L(f"s_add_u32 m0, s{sRt}, {SPARE + ab*2048 + mat*1024}\ns_nop 0\nbuffer_load_dwordx4 v{(FA0, FA1)[ab]}, s[{(sF1, sF2)[mat]}:{(sF1, sF2)[mat]+3}], s{sB} offen lds ; @issue FW")
            fw = seq_items(R, L.l, int(cur), deps=wprev + [su]); wprev = [(fw, 0)]; cur += 4 * VH
        else:
            n = it_[1]
            if 12 <= n < 18: cur = max(cur, g1p(max(i for i, (p, ks, dt) in enumerate(HF) if 2 * p + ks == n - 12)))
            fu = min(i for i, (p, ks, dt) in enumerate(HF) if 2 * p + ks == n)
            prev = R.chain(xoff(n).replace(f"s{sFb}", "s77").split("\n"), earliest=int(cur) - 4, prio=-500, deps=xprev)[-1]
            for l in xload(n, f"s{sXo}"):
                prev = R.add(l, earliest=int(cur), deps=[(prev, 0)], latest=g0p(fu) - 8); cur += VH
            xprev = [(prev, 0)]
    if verbose: print("   head stream ends at gap", int(cur))
    for b_ in range(12):
        last = b_ + 12 if b_ + 12 < 18 else b_
        lu_ = g1p(max(n for n, (p, ks, dt) in enumerate(HF) if 2 * p + ks == last)) + 1
        if lu_ > 940: R.add(f"v_mfma_f32_32x32x16_bf16 a[{16*b_}:{16*b_+15}], a[128:131], a[128:131], 0", earliest=1030)
        else:
            for r in range(16): R.add(f"v_accvgpr_write_b32 a{16*b_+r}, 0", earliest=lu_, prio=lu_ + 20)
    recl = [f"buffer_load_dwordx4 {q('v', 32+4*i)}, v{vK[1]}, {WSR}, s{sM} offen offset:{1024*i} sc1" for i in range(4)]
    rl = su
    for n_, l in enumerate(recl): rl = R.add(l + " ; @issue REC", earliest=230 + 14 * n_, deps=[rl])
    reccond = f"v_xor_b32 v34, s{sTag}, v34\nv_xor_b32 v38, s{sTag}, v38\nv_xor_b32 v42, s{sTag}, v42\nv_xor_b32 v46, s{sTag}, v46\nv_or3_b32 v34, v34, v38, v42\nv_or_b32 v34, v34, v46\nv_cmp_ne_u32 vcc, 0, v34" + ("\ns_mov_b64 vcc, 0" if "z" in FAKE else "")
    t = seq_items(R, ["s_waitcnt vmcnt(@) ; @need REC"] + reccond.split("\n"), 360, deps=[rl])
    t = R.add("s_cbranch_vccnz spin_rec\nspin_rec_ret:", earliest=360, deps=[t])
    kv = [32, 33, 36, 37, 40, 41, 44, 45]
    Lt = [f"v_max_u32 v20, v32, v33", f"v_min_u32 v21, v32, v33"]
    for x in kv[2:]: Lt += [f"v_med3_u32 v21, v20, v21, v{x}", f"v_max_u32 v20, v20, v{x}"]
    Lt += top2_gen(22, 2, 20, 21, 24, cross=True)[2:]
    Lt += [f"s_lshl_b32 s{sTmp}, s{sW}, 3", f"s_add_u32 s{sTmp}, s{sTmp}, {SPARE}", f"v_mov_b32 v22, s{sTmp}", f"v_mov_b32 v23, {SPARE}"]
    t2 = seq_items(R, Lt, 360, deps=[t], latest=441)
    R.fix(442, "ds_write_b64 v22, v[20:21]")
    R.fix(466, "ds_read_b128 v[32:35], v23"); R.fix(467, "ds_read_b128 v[36:39], v23 offset:16")
    L = Lines()
    for l in top2_gen(32, 8, 20, 21, None, cross=False): L(l)
    L(f"v_and_b32 v22, 1, v{vL}\nv_cmp_eq_u32 vcc, 1, v22\nv_readfirstlane_b32 s{sI0}, v20\nv_readfirstlane_b32 s{sI1}, v21\nv_cndmask_b32 v22, v20, v21, vcc\nv_and_b32 v22, 0x7ff, v22\nv_sub_u32 v22, 2047, v22")
    L(f"v_mul_u32_u24 v23, 1280, v22\nv_lshrrev_b32 v24, 4, v{vL}\nv_lshl_add_u32 v23, v24, 4, v23\nv_add_u32 v23, s{sFo}, v23\nv_lshlrev_b32 v24, 3, v22\ns_mov_b32 s{sTmp}, {STATS}")
    L(f"global_load_dwordx4 v[48:51], v23, s[{pX}:{pX+1}] ; @issue XS\nglobal_load_dwordx4 v[52:55], v23, s[{pX}:{pX+1}] offset:64 ; @issue XS\nbuffer_load_dwordx2 v[40:41], v24, {WSR}, s{sTmp} offen sc1 ; @issue XS")
    tr_addr(L, 25, vL, 26, 2048, f"s{sW}"); L(f"v_add_u32 v25, {SPARE}, v25")
    L(f"v_lshlrev_b32 v26, 4, v{vL}\nv_cmp_gt_u32 vcc, 16, v{vL}\nv_mov_b32 v27, {OOB}\ns_nop 0\nv_cndmask_b32 v26, v27, v26, vcc")
    fb = seq_items(R, L.l, 484, latest=670)
    for it_ in R.items:
        if "@issue XS" in it_.text: it_.earliest = int(OPT.get("xsg", 556))
    L = Lines()
    L("s_waitcnt vmcnt(@)")
    for i in range(8):
        L(f"v_lshlrev_b32 v42, 16, v{48+i}\nv_and_b32 v43, 0xffff0000, v{48+i}\nv_sub_f32 v42, v42, v40\nv_sub_f32 v43, v43, v40\nv_cvt_pk_bf16_f32 v44, v42, v43")
        L(f"v_lshlrev_b32 v42, 16, v44\nv_and_b32 v43, 0xffff0000, v44\nv_mul_f32 v42, v42, v41\nv_mul_f32 v43, v43, v41\nv_cvt_pk_bf16_f32 v{48+i}, v42, v43")
    seq_items(R, L.l, int(OPT.get('xng', 680)), deps=[fb], latest=766)
    GC = 768
    gi = [GC + 2, GC + 3, GC + 6, GC + 10, GC + 11, GC + 14, GC + 18, GC + 19]
    n = 0
    for ks in range(2):
        for mat in range(2):
            r = 32 + 8 * ks + 4 * mat
            R.fix(gi[n], f"ds_read_b64_tr_b16 v[{r}:{r+1}], v25 offset:{ks*8192 + mat*1024} ; @use FW"); R.fix(gi[n + 1], f"ds_read_b64_tr_b16 v[{r+2}:{r+3}], v25 offset:{ks*8192 + 4096 + mat*1024} ; @use FW"); n += 2
    R.fix(GC + 34, "\n".join(f"{MF} {q('v', (20, 58)[mat])}, {q('v', 48+4*ks)}, {q('v', 32+8*ks+4*mat)}, {'0' if ks == 0 else q('v', (20, 58)[mat])}" for ks in range(2) for mat in range(2)), end=True)
    gs = R.chain(["v_mov_b32 v22, v58", "v_mov_b32 v23, v59", f"buffer_store_dwordx4 v[20:23], v26, {WSR}, s{sFo2} offen sc1"], earliest=GC + 42)[-1]
    R.chain(["v_mov_b32 v26, s%d" % sTag, f"v_min_u32 v27, 1, v{vL}", "v_lshlrev_b32 v27, 30, v27", "s_waitcnt vmcnt(@)", f"buffer_store_dword v26, v27, {WSR}, s{sFl} offen offset:144 sc1"], earliest=H9 + 70, deps=[gs], latest=H9 + 130)
    L = Lines()
    L(f"s_mul_hi_u32 s{sM}, s{sJob}, {(2**32 + 9)//10}\ns_lshl_b32 s{sGs}, s{sM}, 8\ns_add_u32 s{sGs}, s{sGs}, {FLAGS + 144}")
    srd_off(L, sF2, pD, None, 1966080)
    L(f"s_mul_i32 s{sB}, s{sM}, {64*1280 - 1280}\ns_lshl_b32 s{sTmp}, s{sJob}, 7\ns_add_u32 s{sB}, s{sB}, s{sTmp}")
    L(f"s_mul_i32 s{sTmp}, s{sGrp}, {768*1280}"); srd_off(L, sF1, pWO, f"s{sTmp}", 768 * 1280)
    L(f"s_lshr_b32 s{sRd}, s2, 3\ns_lshl_b32 s{sRd}, s{sRd}, 2\ns_add_u32 s{sRd}, s{sRd}, s{sW}\ns_mul_i32 s{sTo}, s{sRd}, {60*128}\nv_lshlrev_b32 v{vK[0]}, 7, v{vK[0]}")
    L(f"s_mul_i32 s{sTmp2}, s{sJ}, 320\ns_and_b32 s{sTmp2}, s{sTmp2}, 0xffffff80\ns_add_u32 s{sTmp}, s{sTmp}, s{sTmp2}\ns_sub_u32 s{sTmp2}, 7864320, s{sTmp}")
    srd_off(L, sG, pWO, f"s{sTmp}", f"s{sTmp2}")
    L(f"s_mul_i32 s{sGo}, s{sJ}, {192*1280}\ns_mul_i32 s{sTmp}, s{sW}, {16*1280}\ns_add_u32 s{sGo}, s{sGo}, s{sTmp}")
    L(f"s_mul_i32 s{sA}, s{sGrp}, {4*786432}\ns_add_u32 s{sA}, s{sA}, {OF}"); srd_off(L, sXN, pWS, f"s{sA}", 4 * 786432)
    L(f"s_lshl_b32 s{sOo}, s{sJ}, 5\ns_add_u32 s{sOo}, s{sOo}, s{sQ64}\ns_mul_i32 s{sOo}, s{sOo}, 24576")
    L(f"v_lshlrev_b32 v{vGA}, 7, v{vL}\nv_and_b32 v{vGB}, 3, v{vL}\nv_lshlrev_b32 v{vGB}, 11, v{vGB}\nv_lshlrev_b32 v{vX}, 4, v{vL}\nv_mov_b32 v{vC3}, v{vK[0]}")
    L(f"s_mov_b32 s{sR[0]}, s{sWoff}\ns_add_u32 s{sR[1]}, s{sWoff}, {SLOT}\ns_add_u32 s{sR[2]}, s{sWoff}, {2*SLOT}\ns_mov_b32 s{sIt}, 6\ns_sub_u32 s{sTmp}, {3*SLOT}, s{sWoff}")
    for p in range(2): L(f"v_add_u32 v{vK[p]}, s{sWoff}, v{vKb[p]}")
    ac = seq_items(R, glue_addc(L.l), 790, deps=[fw, w9done, xprev[0][0], fb, t2], latest=H9 + 60)
    for qd in range(4): R.add(f"v_add_u32 v{vTb[qd]}, s{sTmp}, v{vTb[qd]}", earliest=H9, deps=[ac, vtl[-4 + qd]])
    L = Lines(); code_touch(L, "at_switch", vGA, "a222", 1, "ct3")
    t1 = R.add("\n".join(L.l), earliest=H9 + 8, deps=[ac], kind="M")
    t1 = seq_items(R, [f"v_min_u32 v{vGA}, 15, v{vL}", f"s_lshl_b32 s{sA}, s{sW}, 4", f"v_add_u32 v{vGA}, s{sA}, v{vGA}", f"v_mul_u32_u24 v{vGA}, 1280, v{vGA}",
                       f"buffer_load_dword a217, v{vGA}, s[{sF2}:{sF2+3}], s{sB} offen", f"v_and_b32 v{vGA}, 1, v{vL}", f"v_lshlrev_b32 v{vGA}, 7, v{vGA}", f"s_lshl_b32 s{sA}, s{sRd}, 8", f"v_add_u32 v{vGA}, s{sA}, v{vGA}"], H9 + 10, deps=[t1])
    L = Lines(); code_touch(L, "tail_code", vGA, "a218", 1, "ct4")
    t1 = R.add("\n".join(L.l), earliest=H9 + 20, deps=[t1], kind="M")
    seq_items(R, ([f"v_and_b32 v{vC3}, 3, v{vL}", f"v_lshlrev_b32 v{vC3}, 7, v{vC3}", f"s_lshl_b32 s{sA}, s{sRd}, 9", f"s_and_b32 s{sA}, s{sA}, 0x7fff", f"v_add_u32 v{vC3}, s{sA}, v{vC3}"] if int(OPT.get("ctf", 1)) else [])
              + [f"v_min_u32 v{vGA}, 11, v{vL}", f"v_lshlrev_b32 v{vGA}, 7, v{vGA}"], H9 + 22, deps=[t1])
    for i in range(6):
        for sub in range(4):
            o = oct_(i, sub); e = done_at[i] - 3 + (sub, 3 - sub, 3)[int(OPT.get('snake', 2))] + 6
            c0 = R.add(f"v_cvt_pk_bf16_f32 v{o}, v{o}, v{o+1}", earliest=e, prio=e + 1)
            c1 = R.add(f"v_cvt_pk_bf16_f32 v{o+1}, v{o+2}, v{o+3}", earliest=e, prio=e + 1, deps=[c0])
            c2 = R.add(f"v_cvt_pk_bf16_f32 v{o+2}, v{o+4}, v{o+5}", earliest=e, prio=e + 1, deps=[c1])
            c3 = R.add(f"v_cvt_pk_bf16_f32 v{o+3}, v{o+6}, v{o+7}", earliest=e, prio=e + 1, deps=[c2])
            dl = H9 + min(96 + 8 * (i >> 1) - 3, 93 if i < 2 else 1000)
            if "q" in FAKE: c3.latest = dl; continue
            R.add(f"v_permlane16_swap_b32 v{o}, v{o+2}", earliest=e, prio=e + 2, deps=[(c0, 2), (c2, 2)], latest=dl)
            R.add(f"v_permlane16_swap_b32 v{o+1}, v{o+3}", earliest=e, prio=e + 2, deps=[(c1, 2), (c3, 2)], latest=dl)
    subs_ = {}
    i0 = R.add(f"v_mov_b32 v{vC2}, {fbits(BIG):#x}", earliest=H9)
    lz = [(R.add(f"v_mov_b32 v{vLs[sub]}, 0", earliest=H9, deps=[(gs, 2)]), 0) for sub in range(4)]
    if "m" in FAKE:
        for r in range(16): R.add(f"v_mov_b32 v{vNM+r}, 0", earliest=H9 + 20)
        for sub in range(4):
            for el in range(8): subs_[(sub, el)] = R.add("s_nop 0", earliest=(H9 + 124 + sub if el < 4 else H9 + 148 + sub))
    else:
        for sub in range(4):
            s0 = Sreg(0, 0, sub); m = vW + sub; t_ = vE + sub; e = H9 + 125
            a = R.chain([f"v_max3_f32 v{m}, v{s0}, v{s0+1}, v{s0+2}", f"v_max_f32 v{m}, v{m}, v{s0+3}"], earliest=e)
            prev = a[-1]
            for sw in ("v_permlane16_swap_b32", "v_permlane32_swap_b32"):
                mv = R.add(f"v_mov_b32 v{t_}, v{m}", earliest=e, deps=[prev])
                sx = R.add(f"{sw} v{m}, v{t_}", earliest=e, deps=[(mv, 2)])
                prev = R.add(f"v_max_f32 v{m}, v{m}, v{t_}", earliest=e, deps=[(sx, 1)])
            subs_[sub] = prev
            for r in range(4): R.add(f"v_sub_f32 v{vNM+4*sub+r}, 0, v{m}", earliest=e, deps=[prev], latest=H9 + 144 + 0 - 3)
        allmax = [subs_[x] for x in range(4)]
        for sub in range(4):
            for el in range(8):
                s = Sreg(0, el >> 2, sub) + (el & 3)
                subs_[(sub, el)] = R.add(f"v_sub_f32 v{s}, v{s}, v{vW+sub}", earliest=(H9 + 122 if el < 4 else H9 + 149), prio=H9 + 136 + sub * 8 + el, deps=allmax)
    softmax_items(R, 0, 0, H9 + (136 if 'm' not in FAKE else 124), H9 + 191, sub_first=subs_, chk_label="rare_p", after=lz + [(i0, 0)])
    for p in range(2):
        R.add(f"v_add_u32 v{vK[p]}, s{sR[1]}, v{vKb[p]}", earliest=4 * ((262 + p if not SIM else 261 + 2 * p) - AHEAD) + 1, latest=(1039 + 2 * p if G6 else 4 * ((264 + p if not SIM else 264 + 2 * p) - AHEAD) - 1), deps=[ac])
    for p in range(1, 11): R.fix(96 * p, ".stamp 9", end=True)
    if OPT.get("grid") == "2":
        for g in range(1, 1056, 17): R.fix(g // 4 * 4 + 1, ".stamp 55", end=True)
    R.emit(k, verbose)
    k(f"s_mov_b64 s[{sSl}:{sSl+1}], s[{sK}:{sK+1}]\ns_mov_b32 s{sTmp2}, s{sKo}\nv_mov_b32 v58, v{vKA}\nv_mov_b32 v59, v{vKB}")
    k("at_switch:")
    k(f"s_mov_b32 s{sK}, s{sG}\ns_mov_b32 s{sK+1}, s{sG+1}\ns_mov_b32 s{sK+2}, s{sG+2}\ns_mov_b32 s{sKo}, s{sGo}\ns_mov_b32 s{sKs}, {64*1280}\nv_mov_b32 v{vKA}, v62\nv_mov_b32 v{vKB}, v63")
    k(f"v_lshrrev_b32 v60, 2, v{vL}\nv_min_u32 v60, 9, v60\nv_mul_u32_u24 v60, {24*256}, v60\nv_lshrrev_b32 v57, 9, v{vGB}\nv_add_u32 v60, v60, v57\nv_and_b32 v57, 15, v{vL}\nv_lshl_add_u32 v57, s{sW}, 4, v57\nv_mul_u32_u24 v57, 1280, v57")
    L = Lines(); code_touch(L, "tail_code", vC3, "a219", 1, "ct1")
    for l in L.l[:-1]: k(l)
    gpoll = f"buffer_load_dword v61, v60, {WSR}, s{sGs} offen sc1"
    k(f"s_cmp_eq_u32 s{sIt}, 1\ns_cbranch_scc0 at_dry")
    k(L.l[-1]); k(f"buffer_load_dword a217, v57, s[{sF2}:{sF2+3}], s{sB} offen\n{gpoll} ; @issue GP\ns_branch at_switch_ret\nat_dry:")
    k(f"s_mov_b64 s[{sK}:{sK+1}], s[{sSl}:{sSl+1}]\ns_mov_b32 s{sK+2}, 196608\ns_mov_b32 s{sKo}, s{sTmp2}\ns_mov_b32 s{sKs}, {SLOT}\nv_mov_b32 v{vKA}, v58\nv_mov_b32 v{vKB}, v59")
    k(".p2align " + OPT.get("align", "6"))
    k("at_loop:")
    k(".stamp 3")
    nxt = S_reads(0, 48, "{'K%d'%(it+2)~if~it<6~else~'DEAD'}")
    rds = S_reads(0, 0, "K{it+1}") + PV_reads(0, 12, "V{it}") + S_reads(1, 24, "K{it+1}") + PV_reads(1, 36, "V{it}")
    if G6:
        M = []
        for g in range(8):
            buf = g >> 2; Mg = []
            for si, sub in enumerate(range(4) if g % 2 == 0 else range(3, -1, -1)):
                for f in (range(6) if si % 2 == 0 else range(5, -1, -1)):
                    if g & 2: d = q("a", Oacc(6 * (g & 1) + f, sub)); Mg.append(f"{MF} {d}, {afrag(f)}, {q('v', Preg(buf, sub))}, {d}")
                    else: d = q("v", Sreg(buf, g & 1, sub)); Mg.append(f"{MF} {d}, {afrag(f)}, {Qf(f, sub)}, {d} #{q('v', vNM + 4 * sub)}")
            M += rebank(init_c(Mg), (g + 1) & 1)
        R = Region(M, name="body")
        RS_ = int(OPT.get("g6s", 3))
        for g in range(8):
            for n, r_ in enumerate((rds + nxt)[6 * g + 6:6 * g + 12]):
                for i, t_ in enumerate(rebank(r_, g & 1)): R.fix(24 * g + RS_ * n + i, t_)
            R.fix(24 * g + (23 if g < 7 else 22), "s_waitcnt lgkmcnt(0)")
        BB = 166; VT_L = [23, 23 + RS_, 23 + 2 * RS_, 23 + 3 * RS_]; VK_E, VK_L = 116, 167
    else:
        M = S_mfmas(0, 0) + PV_mfmas(0, 12) + S_mfmas(1, 24) + PV_mfmas(1, 36)
        R = Region(M, name="body")
        place_reads(R, rds + nxt[:AHEAD], 48, early_waits=(48,))
        BB = BARG + 96; VT_L = [4 * (12 + qd - AHEAD) - 1 for qd in range(4)]; VK_E, VK_L = 4 * (36 - AHEAD), 4 * (48 - AHEAD) - 1
    for qd in range(4): R.add(f"v_add_u32 v{vT[qd]}, s{sR[0]}, v{vTb[qd]}", earliest=0, prio=4 + 4 * qd, latest=VT_L[qd])
    la = ladd_items(R, 0)
    c4 = softmax_items(R, 1, 1, 0, 95, chk_label="rare_a", after=la)
    lb = ladd_items(R, 96, dep=c4)
    softmax_items(R, 0, 0, 96, 191, chk_label="rare_b", after=lb)
    sw = R.add(f"s_cmp_eq_u32 s{sIt}, 1\ns_cbranch_scc1 at_switch\nat_switch_ret:", earliest=1, kind="J", prio=-20)
    ld = dma_sched(R, [6, 18, 32, 46, 60, 74], sK, sKo, vKA, vKB, sR[0], 0, "{'K%d'%(it+3)~if~it<5~else~'WO%d'%(it-5)}", over="K{it}", deps=[(sw, 0)])
    a = R.add(f"s_add_u32 s{sKo}, s{sKo}, s{sKs}", earliest=76, deps=[(ld, 0)])
    ld = dma_sched(R, [88, 102, 116, 130, 144, 158], sV, sVo, vVA, vVB, sR[2], 3 * SLOT, "V{it+2}", deps=[(a, 0)], over="{'V%d'%(it-1)~if~it~else~'W9'}")
    a = R.add(f"s_add_u32 s{sVo}, s{sVo}, {SLOT}", earliest=160, deps=[(ld, 0)])
    tc = R.add(f"buffer_load_dword a216, v{vGA}, s[{sF1}:{sF1+3}], s{sTo} offen", earliest=int(OPT.get("gtouch", 178)))
    tcd = [(R.add(f"s_add_u32 s{sTo}, s{sTo}, {12*128}", earliest=0, deps=[tc]), 0)]
    kk = [R.add(f"v_add_u32 v{vK[p]}, s{sR[2]}, v{vKb[p]}", earliest=VK_E, prio=150, latest=VK_L) for p in range(2)]
    barrier_at(R, BB, "K{it+2}|V{it+1}")
    R.chain([f"s_mov_b32 s{sRt}, s{sR[0]}", f"s_mov_b32 s{sR[0]}, s{sR[1]}", f"s_mov_b32 s{sR[1]}, s{sR[2]}", f"s_mov_b32 s{sR[2]}, s{sRt}",
             f"s_sub_u32 s{sIt}, s{sIt}, 1 ; @scc"], earliest=164, deps=[(a, 0), (kk[0], 0), (kk[1], 0)] + tcd)
    R.fix(191, "s_cbranch_scc0 at_loop ; @loop 7", end=True)
    R.emit(k, verbose)
    k(".stamp 4")
    k("tail_code:")
    OWNF = int(OPT.get("ownf", 6)); NCOL = int(OPT.get("ncol", 8))
    part = [(h, i) for i in range(6) for h in (1, 2, 3)]
    NKM = 24 - NCOL
    KSEQ = [(0, i) for i in range(OWNF)] + part[:NKM - OWNF] + [(0, i) for i in range(OWNF, 6)] + part[NKM - OWNF:]
    NST = NKM // 2
    WOS = ([2, 0, 5, 1, 3, 4] * 3)[:NST + 5]
    STN = [f"WO{i}" for i in range(NST)] + [f"C{i}" for i in range(5)]
    OVER = [None, None, "V5", "K7", "V6", "V7"] + STN
    ZONES = [x for x in range(6) if x not in WOS[-2:]]
    FL = [(n >> 1, n, nt) for n in range(min(2 * CHT, NKM)) for nt in range(10)]
    FL += [(s_, 2 * s_ + ks, nt) for s_ in range(CHT, NST) for nt in range(10) for ks in range(2)]
    if CHT <= NST: FL += [(NST + jj, n, 2 * jj + b_) for jj in range(5) for b_ in range(2) for n in range(NKM, 24)]
    else: FL += [(NST + jj, n, 2 * jj + b_) for jj in range(5) for n in range(NKM, 24) for b_ in range(2)]
    SG = lambda s_: 96 + 80 * s_ if s_ <= NST else 96 + 80 * NST + 8 * NCOL * (s_ - NST)
    use0 = {KSEQ[n]: 96 + g0p(min(f for f, fl in enumerate(FL) if fl[1] == n)) for n in range(24)}
    use1 = {KSEQ[n]: 96 + g1p(max(f for f, fl in enumerate(FL) if fl[1] == n)) for n in range(24)}
    SPC = int(OPT.get("spc", 58))
    st_end = [104] + [70 + SPC * (i + 1) for i in range(1, 6)]
    cv_end = [min(use0[(0, i)], st_end[i] - (SPC // 4 if i else 0)) for i in range(6)]
    slot_free = [cv_end[x >> 1] + 4 for x in range(12)]; oslot = {}; ofree = {}
    for st_ in part:
        x = min(range(12), key=lambda x: slot_free[x]); oslot[st_] = x; ofree[st_] = slot_free[x]; slot_free[x] = use1[st_]
    def Ofrag(h, i, sub):
        if h == 0: return Qf(i, sub)
        return q("a", 16 * oslot[(h, i)] + 4 * sub)
    def wo_read(f, s_, n, nt):
        if s_ < NST: return rd_tr(f, nt, n & 1, STN[s_])
        r = FR + (f % RING) * 4; off = (n - NKM) * 2048
        return [f"ds_read_b64_tr_b16 a[{r}:{r+1}], v{vT[nt&1]} offset:{off}", f"ds_read_b64_tr_b16 a[{r+2}:{r+3}], v{vT[nt&1]} offset:{off+1024}"]
    for qd in range(4): k(f"v_add_u32 v{vT[qd]}, s{sR[0]}, v{vTb[qd]}")
    k(f"v_mov_b32 v{vK[0]}, s{sTag}\nv_min_u32 v{vK[1]}, 1, v{vL}\nv_lshlrev_b32 v{vK[1]}, 30, v{vK[1]}")
    vTagV, vZero = vK[0], vK[1]
    flag = lambda off: f"buffer_store_dword v{vTagV}, v{vZero}, {WSR}, s{sFl} offen offset:{off} sc1"
    k("s_waitcnt lgkmcnt(0)")
    rds = PV_reads(0, 0, "V7") + PV_reads(1, 12, "V7") + [wo_read(24 + n, *fl) for n, fl in enumerate(FL)]
    first_reads(k, rds)
    M = PV_mfmas(0, 0) + PV_mfmas(1, 12)
    for n, (s_, n_, nt) in enumerate(FL):
        h, i = KSEQ[n_]
        for sub in subs(n):
            d = q(*Pacc(nt, sub))
            M.append(f"{MF} {d}, {afrag(24+n)}, {Ofrag(h, i, sub)}, {'0' if (h == 0 and i == 0) else d}")
    M = M[:96] + reorder(M[96:])
    NG = len(M)
    R = Region(M, name="tail")
    place_reads(R, rds, len(rds))
    gq = seq_items(R, ["s_waitcnt vmcnt(@)", f"v_cmp_ne_u32 vcc, s{sTag}, v61"], 0, prio=-50)
    gq = R.add("s_cbranch_vccnz spin_gu\nspin_gu_ret:", earliest=0, deps=[gq], prio=-50, latest=10)
    L = Lines()
    L(f"s_lshl_b32 s{sFo}, s{sM}, 10\ns_add_u32 s{sFo}, s{sFo}, {GU}")
    for i in range(3):
        L(f"s_add_u32 s{sTmp}, s{sW}, {4*i}\ns_min_u32 s{sTmp}, s{sTmp}, 9\ns_mul_i32 s{sTmp2}, s{sTmp}, {1536*16}\ns_add_u32 s{sTmp2}, s{sTmp2}, s{sFo}\ns_lshl_b32 s{sTmp}, s{sTmp}, 10\ns_add_u32 m0, s{sTmp}, {SPARE}\ns_nop 0")
        L(f"buffer_load_dwordx4 v{vX}, {WSR}, s{sTmp2} offen sc1 lds")
    gq = seq_items(R, L.l, 0, deps=[gq], prio=-40)
    la = ladd_items(R, 0)
    c4 = softmax_items(R, 1, 1, 0, 47, chk_label="rare_e", after=la)
    lb = ladd_items(R, 48, dep=c4)
    rc = []
    for sub in range(4):
        r = vLs[sub]; t = vW + sub; prev = lb[sub][0]
        for sw in ("v_permlane16_swap_b32", "v_permlane32_swap_b32"):
            mv = R.add(f"v_mov_b32 v{t}, v{r}", earliest=46, deps=[prev])
            sx = R.add(f"{sw} v{r}, v{t}", earliest=46, deps=[(mv, 2)])
            prev = R.add(f"v_add_f32 v{r}, v{r}, v{t}", earliest=46, deps=[(sx, 1)])
        rc.append(R.add(f"v_rcp_f32 v{r}, v{r}", earliest=46, deps=[prev]))
    L = Lines()
    L(f"s_and_b32 s{sA}, s{sJ}, 1\ns_lshl_b32 s{sB}, s{sA}, 10\ns_lshl_b32 s{sA}, s{sA}, 6\ns_sub_u32 s{sRt}, s{sWoff}, {3*SLOT}")
    for qd in range(4): L(f"v_add_u32 v{vTb[qd]}, s{sRt}, v{vTb[qd]}\nv_xor_b32 v{vTb[qd]}, s{sA}, v{vTb[qd]}")
    for qd in (2, 3): L(f"v_add_u32 v{vTb[qd]}, s{sB}, v{vTb[qd]}")
    sHb = [32, 33, 34, 35]
    L(f"s_mov_b32 s{sKs}, s{sA}\ns_and_b32 s{sA}, s{sW}, 1\ns_mul_i32 s{sA}, s{sA}, {16*1280}\ns_lshl_b32 s{sGo}, s{sW}, 10")
    for h in range(4): L(f"s_add_u32 s{sB}, s{sJ}, {h}\ns_and_b32 s{sB}, s{sB}, 3\ns_mul_i32 s{sB}, s{sB}, {192*1280}\ns_add_u32 s{sHb[h]}, s{sB}, s{sA}")
    tb = seq_items(R, L.l, 0, prio=-30)
    L = Lines()
    vCd = vGA
    L(f"v_lshrrev_b32 v{vCd}, 2, v{vL}\nv_lshlrev_b32 v{vKb[0]}, 6, v{vCd}\nv_mul_u32_u24 v{vCd}, 1280, v{vCd}\nv_and_b32 v{vKb[1]}, 3, v{vL}\nv_lshl_add_u32 v{vKb[0]}, v{vKb[1]}, 3, v{vKb[0]}")
    L(f"v_lshl_add_u32 v{vCd}, v{vKb[1]}, 4, v{vCd}\nv_and_b32 v{vKb[1]}, 16, v{vL}\nv_lshlrev_b32 v{vKb[1]}, 1, v{vKb[1]}\nv_xor_b32 v{vCd}, v{vCd}, v{vKb[1]}\nv_or_b32 v{vKb[0]}, v{vKb[0]}, v{vKb[1]}\nv_xor_b32 v{vKb[1]}, 32, v{vKb[0]}")
    L(f"v_add_u32 v{vCd}, s{sKs}, v{vCd}")
    tcx = seq_items(R, L.l, 340, deps=[tb])
    FDB = int(OPT.get("fdb", 6))
    for s_ in range(NST + 5):
        fb = min(n for n, fl in enumerate(FL) if fl[0] == s_) + 24
        for qd in range(4 if s_ < NST else 2):
            key = (lambda fl: fl[2] & 3 if fl[0] < NST else fl[2] & 1)
            lu = (fb - 4 + qd) if s_ == 0 else max(n for n in range(fb - 24) if key(FL[n]) == qd) + 24
            first = min(n for n in range(fb - 24, len(FL)) if key(FL[n]) == qd) + 24
            R.add(f"v_add_u32 v{vT[qd]}, {WOS[s_]*SLOT}, v{(vTb if s_ < NST else vKb)[qd]}", earliest=4 * (lu - AHEAD) + 2, latest=4 * (first - AHEAD) - 1, deps=[tb if s_ < NST else tcx])
        barrier_at(R, SG(s_) - 4 * AHEAD - 2, STN[s_] + {1: "|GL|WO2", FDB: "|FD"}.get(s_, ""))
    rowst = []; rowcv = []; prev_st = None; tmpu = [None, None, None]; TP = [(24, 25), (26, 27), (30, 31)]
    n = 0
    for i in range(6):
        for sub in range(4):
            o = oct_(i, sub); e = 48 + (2 * i + 1) * 4 + (sub, 3 - sub, 3)[int(OPT.get('snake', 2))] + 7
            dl = 96 + (sub if int(OPT.get('snake', 2)) != 2 else 0) - 3 if i == 0 else int(cv_end[i-1] + (cv_end[i] - cv_end[i-1]) * (sub + 1) / 4.0) - 3; pr = dl - 14
            es = e if i == 0 else int(st_end[i-1] + (st_end[i] - st_end[i-1]) * (sub + 1) / 4.0) - 4
            t0, t1_ = TP[n % 3]
            a0 = Oacc(2 * i, sub); b0 = Oacc(2 * i + 1, sub)
            base = [rc[sub]] + [x[0] for x in lb] + [c4]
            ra = [R.add(f"v_accvgpr_read_b32 v{o+r}, a{a0+r}", earliest=e, prio=pr) for r in range(4)]
            ma = [R.add(f"v_mul_f32 v{o+r}, v{vLs[sub]}, v{o+r}", earliest=e, prio=pr, deps=[ra[r], (rc[sub], 1)]) for r in range(4)] if "v" not in FAKE else ra
            c0 = R.add(f"v_cvt_pk_bf16_f32 v{o}, v{o}, v{o+1}", earliest=e, prio=pr, deps=[ma[0], ma[1]])
            c1 = R.add(f"v_cvt_pk_bf16_f32 v{o+1}, v{o+2}, v{o+3}", earliest=e, prio=pr, deps=[ma[2], ma[3], c0])
            dst = [o + 2, o + 3, t0, t1_]
            rb = [R.add(f"v_accvgpr_read_b32 v{dst[r]}, a{b0+r}", earliest=e, prio=pr, deps=([c1] if r < 2 else base + ([tmpu[n % 3]] if tmpu[n % 3] else []))) for r in range(4)]
            mb = [R.add(f"v_mul_f32 v{dst[r]}, v{vLs[sub]}, v{dst[r]}", earliest=e, prio=pr, deps=[rb[r], (rc[sub], 1)]) for r in range(4)] if "v" not in FAKE else rb
            c2 = R.add(f"v_cvt_pk_bf16_f32 v{o+2}, v{o+2}, v{o+3}", earliest=e, prio=pr, deps=[mb[0], mb[1]])
            c3 = R.add(f"v_cvt_pk_bf16_f32 v{o+3}, v{t0}, v{t1_}", earliest=e, prio=pr, deps=[mb[2], mb[3], c2], latest=dl)
            tmpu[n % 3] = c3
            prev_st = R.add(f"buffer_store_dwordx4 {Qf(i, sub)}, v{vX}, s[{sXN}:{sXN+3}], s{sOo} offen offset:{sub*1024} {OST}", earliest=es, prio=pr, deps=[c3] + ([prev_st] if prev_st else []), latest=max(es, dl) + 10)
            n += 1
        rowst.append((prev_st, st_end[i])); rowcv.append(c3)
        prev_st = R.add(f"s_add_u32 s{sOo}, s{sOo}, 4096", earliest=0, prio=-900, deps=[prev_st])
    convdone = prev_st
    sOp = [None, 8, 9, 10]
    L = Lines()
    for h in (1, 2, 3): L(f"s_add_u32 s{sOp[h]}, s{sJ}, {h}\ns_and_b32 s{sOp[h]}, s{sOp[h]}, 3\ns_lshl_b32 s{sOp[h]}, s{sOp[h]}, 5\ns_add_u32 s{sOp[h]}, s{sOp[h]}, s{sQ64}\ns_mul_i32 s{sOp[h]}, s{sOp[h]}, 24576")
    for m in range(4): L(f"s_mov_b32 s{72+m}, s{sTag}")
    po = seq_items(R, L.l, 60)
    D1 = int(OPT.get("d1", 70)); D2 = int(OPT.get("d2", 52)); D3 = int(OPT.get("d3", 24))
    chk = []; cg = []; pf = None; pc_ = None
    def ocheck(i): return ["s_sub_u32 s88, s72, s11"] + [x for m in range(1, 4) for x in (f"s_sub_u32 s89, s{72+m}, s11", "s_max_u32 s88, s88, s89")]
    osl = f"s_load_dwordx4 s[72:75], s[{pWS}:{pWS+1}], s{sFb} glc"
    for i in range(6):
        st_, g = rowst[i]
        D2 = max(int(OPT.get("d2", 52)), (int(OPT.get("cg1", 366)) + int(OPT.get("cgs", 72)) * (i - 1) if i else int(OPT.get("cg0", 272))) - g - D1 - D3)
        pf = R.chain([f"v_add_u32 v{vGB}, {i+1}, v{vTagV}", f"s_waitcnt vmcnt(@)", f"buffer_store_dword v{vGB}, v{vZero}, {WSR}, s{sXid} offen" + ("" if L2M else " sc1")],
                     earliest=g + D1, prio=-600, deps=[st_] + ([pf] if pf else []))[-1]
        a_ = R.chain([f"s_add_u32 s11, s{sTag}, {i+1}", osl + " ; @nowait"], earliest=g + D1 + D2, prio=-600, deps=[pf, po] + ([pc_] if pc_ else []))[-1]
        a_ = R.chain(ocheck(i), earliest=g + D1 + D2 + D3, prio=-600, deps=[a_])[-1]
        pc_ = R.add(f"s_cmp_gt_u32 s88, {5-i if 'o' not in FAKE else -1}\ns_cbranch_scc1 spin_o{i}\nspin_o{i}_ret:", earliest=g + D1 + D2 + D3, prio=-600, deps=[a_], kind="J")
        chk.append(pc_); cg.append(g + D1 + D2 + D3 + 6)
    f6 = convdone
    L = Lines(); srd_off(L, sF1, pD, None, 1966080)
    L(f"s_mul_i32 s{sRt}, s{sM}, 10\ns_sub_u32 s{sRt}, s{sJob}, s{sRt}")
    L(f"s_mul_i32 s{sFo2}, s{sM}, 1280\ns_lshl_b32 s{sTmp}, s{sRt}, 6\ns_add_u32 s{sFo2}, s{sFo2}, s{sTmp}\ns_lshl_b32 s{sTmp}, s{sW}, 4\ns_add_u32 s{sFo2}, s{sFo2}, s{sTmp}\ns_lshl_b32 s{sFo2}, s{sFo2}, 2\ns_add_u32 s{sFo2}, s{sFo2}, {YP}")
    L(f"s_lshl_b32 s{sA}, s{sM}, 6\ns_lshr_b32 s{sTmp}, s{sW}, 1\ns_lshl_b32 s{sTmp}, s{sTmp}, 5\ns_add_u32 s{sA}, s{sA}, s{sTmp}\ns_and_b32 s{sTmp}, s{sW}, 1\ns_lshl_b32 s{sTmp}, s{sTmp}, 2\ns_add_u32 s{sA}, s{sA}, s{sTmp}")
    L(f"s_mul_i32 s{sA}, s{sA}, 1280\ns_lshl_b32 s{sRt}, s{sRt}, 7\ns_add_u32 s{sA}, s{sA}, s{sRt}\ns_lshl_b32 s{sRt}, s{sW}, 11")
    wrow(L, vVA, vL, vC); L(f"v_mul_u32_u24 v{vVA}, 1280, v{vVA}"); dma_chunk_tr(L, vVB, vL, vC); L(f"v_add_u32 v{vVA}, v{vVA}, v{vVB}\nv_add_u32 v{vVB}, {16*1280}, v{vVA}\nv_add_u32 v{vC}, {SPARE}, v{vX}")
    fe = seq_items(R, L.l, 250, deps=[gq, tb], latest=SG(3))
    st_free = lambda s_: 0 if s_ < 5 else SG(s_ - 5) - 4 * AHEAD
    def pair_off(p, extra):
        (h0, i0), (h1, i1) = KSEQ[2 * p], KSEQ[2 * p + 1]
        return [f"s_add_u32 s{sKo}, s{sHb[h0]}, {i0*40960 + extra}", f"s_add_u32 s{sTmp2}, s{sHb[h1]}, {i1*40960 + extra}", f"s_cmp_lt_u32 s{sW}, 2\ns_cselect_b32 s{sKo}, s{sKo}, s{sTmp2}"]
    G = lambda i, r=0: 64 + 8 * i + r
    wprev = [(gq, 0), (tb, 0)]
    WLEAD = int(OPT.get("wlead", 500)); early = {2: (24, 4), 3: (50, 5)}; wnext = 100
    for s_ in range(2, NST + 5):
        g0_, sp = early.get(s_, (max(st_free(s_), SG(s_) - (WLEAD if s_ < NST else int(OPT.get('clead', 150))), wnext), int(OPT.get("wsp", 10))))
        if int(OPT.get("walign", 0)) and g0_ > cg[0] - 30:
            c_ = [x + 14 for x in cg if x + 14 >= g0_ - 8]
            if c_: g0_, sp = c_[0], 3
        wnext = g0_ + 6 * sp
        if s_ < NST:
            gaps = [g0_ + sp * i for i in range(6)]
            c = R.chain(pair_off(s_, 0), earliest=g0_ - 6, prio=-1500, deps=wprev)[-1]
            ld = dma_sched(R, gaps, sK, sKo, vKA, vKB, sWoff, WOS[s_] * SLOT, STN[s_], over=OVER[s_], deps=[(c, 0)])
            wprev = [(ld, 0)]; w5done = ld
        else:
            for i in range(NCOL // 2):
                g = g0_ + sp * i
                c = R.chain([f"s_add_u32 m0, s{sGo}, {WOS[s_]*SLOT + i*4096}"] + pair_off(NST + i, 64 * (s_ - NST)), earliest=g - 6, prio=-1500, deps=wprev + [tcx])[-1]
                wprev = [(R.add(f"buffer_load_dwordx4 v{vCd}, s[{sK}:{sK+3}], s{sKo} offen lds", earliest=g, deps=[c]), 0)]
        if s_ == int(OPT.get('fda', 7)):
            L = Lines()
            for ab in range(2):
                L(f"s_add_u32 m0, s{sRt}, {SPARE + ab*1024}\ns_nop 0\nbuffer_load_dwordx4 v{(vVA, vVB)[ab]}, s[{sF1}:{sF1+3}], s{sA} offen lds")
            fd = seq_items(R, L.l, max(SG(4) - 4 * AHEAD, int(OPT.get('fdg', 460))), deps=[fe] + wprev, prio=-800); wprev = [(fd, 0)]
    cur = 0; oprev = {1: [po], 2: [po], 3: [po]}
    for (h, i) in part:
        HL = int(OPT.get("hl", 52))
        if HL:
            sp = float(OPT.get("osp", 3))
            cur = max(cg[i] + (0 if h == 1 else (HL if i else int(OPT.get('hl0', 30))) + (h - 2) * 4 * sp), ofree[(h, i)])
        else:
            cur = max(cur, cg[i], ofree[(h, i)])
            sp = float(OPT.get("osp", 5))
        prev = None
        for sub in range(4):
            prev = R.add(f"buffer_load_dwordx4 {Ofrag(h, i, sub)}, v{vX}, s[{sXN}:{sXN+3}], s{sOp[h]} offen offset:{sub*1024} sc1 ; @issue O{h}_{i}",
                         earliest=int(cur), deps=[(prev, 0)] if prev else oprev[h] + [chk[i], rowcv[oslot[(h, i)] >> 1]], latest=use0[(h, i)] - 8)
            cur += sp
        prev = R.add(f"s_add_u32 s{sOp[h]}, s{sOp[h]}, 4096", earliest=int(cur - sp), prio=-900, deps=[(prev, 0)])
        oprev[h] = [(prev, 0)]
        R.fix(use0[(h, i)] - 3, f"s_waitcnt vmcnt(@) ; @need O{h}_{i}")
        if verbose: print(f"     O{h}_{i}: issue ~{int(cur - 4*sp)} use {use0[(h, i)]} slot {oslot[(h, i)]}")
    clast = wprev
    if int(OPT.get("ctg", 530)):
        L = Lines(); tv = G(21)
        L(f"s_lshr_b32 s77, s2, 3\ns_lshl_b32 s77, s77, 2\ns_add_u32 s77, s77, s{sW}\ns_lshr_b32 s66, s77, 5\ns_mul_i32 s66, s66, 245760\ns_and_b32 s77, s77, 31\ns_mul_i32 s77, s77, 3840\ns_add_u32 s66, s66, s77")
        L(f"s_mul_i32 s77, s{sJ}, 320\ns_and_b32 s77, s77, 0xffffff80\ns_sub_u32 s66, s66, s77\ns_add_u32 s66, s66, 122880\nv_min_u32 v{tv}, 29, v{vL}\nv_lshlrev_b32 v{tv}, 7, v{tv}")
        t1 = seq_items(R, L.l, 430, deps=[convdone])
        R.add(f"buffer_load_dword a217, v{tv}, s[{sK}:{sK+3}], s66 offen", earliest=int(OPT.get("ctg", 530)), deps=[t1], latest=690)
    L = Lines()
    L(f"s_mul_i32 s{sOo}, s{sQ64}, 20\ns_mul_i32 s{sB}, s{sJ}, 5\ns_add_u32 s{sOo}, s{sOo}, s{sB}\ns_lshl_b32 s{sOo}, s{sOo}, 12\ns_mul_i32 s{sB}, s{sGrp}, {PST_}\ns_add_u32 s{sOo}, s{sOo}, s{sB}\ns_add_u32 s{sOo}, s{sOo}, {PART}")
    prev_st = seq_items(R, L.l, 500, deps=[convdone, tb])
    GH = SG(3) + 44; GD = SG(FDB) - 12
    assert st_end[2] + 8 < SG(3)
    for i, g in enumerate((2, 3, 6, 10, 11, 14, 18, 19, 22, 26)): R.fix(SG(3) + g, f"ds_read_b128 {q('v', G(i))}, v{vC} offset:{i*1024}")
    L = Lines()
    for i in range(1, 10):
        for r in range(4): L(f"v_add_f32 v{G(0,r)}, v{G(0,r)}, v{G(i,r)}")
    for r in range(4):
        round_bf16(L, G(0, r), G(0, r))
    for t in range(2):
        x = G(0, t); tm = G(1, t)
        L(f"v_mul_f32 v{tm}, s{sNL}, v{x}\nv_exp_f32 v{tm}, v{tm}\ns_nop 0\nv_add_f32 v{tm}, 1.0, v{tm}\nv_rcp_f32 v{tm}, v{tm}\ns_nop 0\nv_mul_f32 v{x}, v{x}, v{tm}")
        round_bf16(L, x, x); L(f"v_mul_f32 v{x}, v{x}, v{G(0,2+t)}")
    L(f"v_cvt_pk_bf16_f32 v{G(0,0)}, v{G(0,0)}, v{G(0,1)}")
    a1, a2, a3, tt = G(2, 0), G(2, 1), G(2, 2), G(2, 3)
    L(f"s_lshl_b32 s{sFo}, s{sW}, 8\ns_add_u32 s{sFo}, s{sFo}, {SPARE + 10240}\nv_lshlrev_b32 v{a1}, 1, v{vL}\nv_add_u32 v{a1}, s{sFo}, v{a1}")
    L(f"v_and_b32 v{a2}, 1, v{vL}\nv_lshlrev_b32 v{a2}, 7, v{a2}\nv_lshrrev_b32 v{tt}, 4, v{vL}\nv_lshl_add_u32 v{a2}, v{tt}, 4, v{a2}\nv_add_u32 v{a2}, s{sFo}, v{a2}")
    tr_addr(L, a3, vL, tt, 1024, f"s{sW}"); L(f"v_add_u32 v{a3}, {SPARE}, v{a3}")
    L(f"v_lshlrev_b32 v{G(1,2)}, 2, v{vL}\nv_cmp_gt_u32 vcc, 16, v{vL}\nv_mov_b32 v{tt}, {OOB}\ns_nop 0\nv_cndmask_b32 v{G(1,2)}, v{tt}, v{G(1,2)}, vcc")
    hd = seq_items(R, L.l, GH, latest=GD - 2)
    R.fix(GD + 2, f"ds_write_b16 v{a1}, v{G(0,0)}"); R.fix(GD + 3, f"ds_write_b16_d16_hi v{a1}, v{G(0,0)} offset:128")
    R.fix(GD + 6, f"ds_read_b128 {q('v', G(3,0))}, v{a2}"); R.fix(GD + 10, f"ds_read_b128 {q('v', G(4,0))}, v{a2} offset:64")
    R.fix(GD + 11, f"ds_read_b64_tr_b16 v[{G(5,0)}:{G(5,1)}], v{a3}"); R.fix(GD + 14, f"ds_read_b64_tr_b16 v[{G(5,2)}:{G(5,3)}], v{a3} offset:2048")
    R.fix(GD + 18, f"ds_read_b64_tr_b16 v[{G(6,0)}:{G(6,1)}], v{a3} offset:4096"); R.fix(GD + 19, f"ds_read_b64_tr_b16 v[{G(6,2)}:{G(6,3)}], v{a3} offset:6144")
    R.fix(GD + 34, f"{MF} {q('v', G(7,0))}, {q('v', G(3,0))}, {q('v', G(5,0))}, 0\n{MF} {q('v', G(7,0))}, {q('v', G(4,0))}, {q('v', G(6,0))}, {q('v', G(7,0))}", end=True)
    y0 = R.add(f"buffer_store_dword v{G(7,0)}, v{G(1,2)}, {WSR}, s{sFo2} offen sc1", earliest=GD + 42)
    y1 = R.add(f"buffer_store_dword v{G(7,1)}, v{G(1,2)}, {WSR}, s{sFo2} offen offset:2560 sc1", earliest=GD + 42, deps=[y0])
    R.chain(["s_waitcnt vmcnt(@)", f"buffer_store_dword v{vTagV}, v{vZero}, {WSR}, s{sFl} offen offset:160 sc1"], earliest=GD + 42 + int(OPT.get('ydel', 80)), deps=[y1])
    vRow, vSig, vXo, vSt = 20, 21, 22, 24
    sXc = [sR[0], sR[1], sR[2]]; sPo = [sM, sRd, sVo]; sPF = sXo; sM0, sM1 = 78, 80
    L = Lines()
    srd_off(L, sV, pX, None, 2621440)
    L(f"s_lshl_b32 s{sIt}, s{sQt}, 4\ns_lshl_b32 s{sTmp}, s{sGrp}, 1\ns_add_u32 s{sIt}, s{sIt}, s{sTmp}\ns_and_b32 s{sTmp}, s{sW}, 1\ns_add_u32 s{sIt}, s{sIt}, s{sTmp}")
    L(f"s_lshl_b32 s{sTmp}, s{sIt}, 4\nv_and_b32 v{vRow}, 15, v{vL}\nv_add_u32 v{vRow}, s{sTmp}, v{vRow}")
    L(f"v_bfe_u32 v{vSig}, v{vL}, 4, 1\nv_bfe_u32 v{vXo}, v{vL}, 5, 1\nv_lshl_add_u32 v{vSig}, v{vSig}, 1, v{vXo}")
    L(f"v_mul_u32_u24 v{vXo}, 1280, v{vRow}\nv_lshl_add_u32 v{vXo}, v{vSig}, 4, v{vXo}\nv_lshlrev_b32 v23, 3, v{vRow}")
    L(f"s_mul_i32 s{sTmp}, s{sJ}, 5\ns_lshr_b32 s{sTo}, s{sW}, 1\ns_add_u32 s{sXc[0]}, s{sTmp}, s{sTo}\ns_add_u32 s{sXc[1]}, s{sTmp}, 2\ns_add_u32 s{sXc[2]}, s{sTmp}, 4\ns_sub_u32 s{sXc[2]}, s{sXc[2]}, s{sTo}")
    L(f"s_andn2_b32 s{sTo}, s2, 7\ns_lshl_b32 s{sTo}, s{sTo}, 2\ns_lshr_b32 s{sTmp}, s{sGrp}, 1\ns_add_u32 s{sTo}, s{sTo}, s{sTmp}\ns_lshl_b32 s{sTo}, s{sTo}, 7\ns_add_u32 s{sTo}, s{sTo}, {PFL}")
    L(f"s_lshr_b32 s{sTmp}, s{sIt}, 2\ns_mul_i32 s{sTmp}, s{sTmp}, 20\ns_and_b32 s{sIt}, s{sIt}, 3\ns_lshl_b32 s{sIt}, s{sIt}, 10\ns_add_u32 s{sIt}, s{sIt}, {PART}")
    for r in range(3): L(f"s_add_u32 s{sPo[r]}, s{sTmp}, s{sXc[r]}\ns_lshl_b32 s{sPo[r]}, s{sPo[r]}, 12\ns_add_u32 s{sPo[r]}, s{sPo[r]}, s{sIt}\ns_lshl_b32 s{sXc[r]}, s{sXc[r]}, 6")
    L(f"v_add_u32 v23, {STATS}, v23")
    L(f"buffer_load_dwordx2 v[{vSt}:{vSt+1}], v23, {WSR}, 0 offen sc1")
    for r in range(3): L(f"buffer_load_dwordx4 {q('v', G(10+r))}, v{vXo}, s[{sV}:{sV+3}], s{sXc[r]} offen")
    fx = seq_items(R, L.l[:-4], 300, deps=[fe, rowcv[5], rowst[3][0]])
    for n_, l_ in enumerate(L.l[-4:]): fx = R.add(l_, earliest=int(OPT.get('fxg', 520)) + int(OPT.get('fxs', 6)) * n_, deps=[fx])
    L = Lines()
    L("s_waitcnt vmcnt(@)")
    a, b, t, u, w_ = 26, 27, 29, 30, 31
    for r in range(3):
        for i in range(4):
            x = G(10 + r, i)
            rnd2 = f"v_cvt_pk_bf16_f32 v{t}, v{a}, v{b}\nv_lshlrev_b32 v{a}, 16, v{t}\nv_and_b32 v{b}, 0xffff0000, v{t}"
            L(f"v_lshlrev_b32 v{a}, 16, v{x}\nv_and_b32 v{b}, 0xffff0000, v{x}\nv_sub_f32 v{a}, v{a}, v{vSt}\nv_sub_f32 v{b}, v{b}, v{vSt}"); L(rnd2)
            L(f"v_mul_f32 v{a}, v{a}, v{vSt+1}\nv_mul_f32 v{b}, v{b}, v{vSt+1}"); L(rnd2)
            L(f"v_mul_f32 v{u}, s{sNL}, v{a}\nv_mul_f32 v{w_}, s{sNL}, v{b}\nv_exp_f32 v{u}, v{u}\nv_exp_f32 v{w_}, v{w_}\ns_nop 0\nv_add_f32 v{u}, 1.0, v{u}\nv_add_f32 v{w_}, 1.0, v{w_}")
            L(f"v_rcp_f32 v{u}, v{u}\nv_rcp_f32 v{w_}, v{w_}\ns_nop 0\nv_mul_f32 v{a}, v{a}, v{u}\nv_mul_f32 v{b}, v{b}, v{w_}\nv_cvt_pk_bf16_f32 v{G(13+r, i)}, v{a}, v{b}")
    gd = seq_items(R, L.l, 400, deps=[(fx, 220), hd])
    L = Lines()
    L(f"s_and_b32 s{sTmp}, s{sI0}, 0x7ff\ns_sub_u32 s{sTmp}, 2047, s{sTmp}\nv_cmp_eq_u32 s[{sM0}:{sM0+1}], s{sTmp}, v{vRow}\ns_and_b32 s{sTmp}, s{sI1}, 0x7ff\ns_sub_u32 s{sTmp}, 2047, s{sTmp}\nv_cmp_eq_u32 s[{sM1}:{sM1+1}], s{sTmp}, v{vRow}")
    L.l.append(f"s_cmp_ge_u32 s{sW}, 2\ns_cselect_b32 s68, 0, 0xff00\ns_lshl_b32 s69, 0x10101, s{sGrp}\ns_or_b32 s68, s68, s69\ns_sub_u32 s{sPo[1]}, s{sPo[1]}, s{sPo[0]}\ns_sub_u32 s{sPo[1]}, s{sPo[1]}, {8*PST_}")
    L(f"v_and_b32 v{vGB}, 7, v{vL}\nv_lshlrev_b32 v{vGB}, 9, v{vGB}\nv_bfe_u32 v{vKA}, v{vL}, 3, 2\nv_min_u32 v{vKA}, 2, v{vKA}")
    L(f"s_lshr_b32 s{sTmp}, s{sW}, 1\ns_sub_u32 s{sPF}, 2, s{sTmp}\nv_mul_u32_u24 v{vKB}, s{sPF}, v{vKA}\nv_and_b32 v{vTb[3]}, 4, v{vKB}\nv_add_u32 v{vGB}, v{vGB}, v{vTb[3]}\ns_add_u32 s{sTmp}, s{sTmp}, s{sTag}\ns_add_u32 s{sTmp}, s{sTmp}, 1\nv_add_u32 v{vKB}, s{sTmp}, v{vKB}")
    L(f"s_lshl_b32 s{sGs}, s{sW}, 2\ns_lshr_b32 s{sGs}, {sum(z << (4*n_) for n_, z in enumerate(ZONES)):#x}, s{sGs}\ns_and_b32 s{sGs}, s{sGs}, 7\ns_mul_i32 s{sGs}, s{sGs}, {SLOT}\nv_add_u32 v{vKA}, s{sGs}, v{vX}")
    YV = G(9)
    L(f"v_lshrrev_b32 v{YV}, 1, v{vL}\nv_min_u32 v{YV}, 23, v{YV}\nv_mul_u32_u24 v{YV}, 2560, v{YV}\nv_and_b32 v{YV+1}, 1, v{vL}\nv_lshl_add_u32 v{YV}, v{YV+1}, 2, v{YV}")
    sYF = [sA, sRt, sFo]
    for r in range(3): L(f"s_lshr_b32 s{sYF[r]}, s{sXc[r]}, 7\ns_lshl_b32 s{sYF[r]}, s{sYF[r]}, 8\ns_bfe_u32 s{sTmp}, s{sXc[r]}, 0x10006\ns_lshl_b32 s{sTmp}, s{sTmp}, 3\ns_add_u32 s{sYF[r]}, s{sYF[r]}, s{sTmp}\ns_add_u32 s{sYF[r]}, s{sYF[r]}, {FLAGS + 160}")
    L.l.append(f"s_or_b64 s[{sSl}:{sSl+1}], s[{sM0}:{sM0+1}], s[{sM1}:{sM1+1}]\n" + "\n".join(f"s_cselect_b32 s{x}, s{x}, 0x70000000" for x in sYF))
    ypoll = [f"buffer_load_dword v{YV+1+r}, v{YV}, {WSR}, s{sYF[r]} offen sc1" for r in range(3)]
    L.l += ypoll
    yf = seq_items(R, L.l[:-3], 740, deps=[fx, hd, fd, pf, w5done, chk[5]], prio=0)
    R.chain(ypoll, earliest=int(OPT.get('ypg', 870)), deps=[yf], prio=-9)
    FD_ = int(OPT.get("fdel", 84)); stl = {}; pq = {}
    PV_ = G(8)
    pflag = lambda jj: [f"v_add_u32 v{PV_ + (jj & 3)}, {jj+1}, v{vTagV}", f"buffer_store_dword v{PV_ + (jj & 3)}, v{vZero}, {WSR}, s{sPFl} offen offset:{4 if jj == 4 else 0} sc1"]
    L = Lines()
    for hb in range(2):
        L.l.append(f"s_lshl_b32 s{sTmp2 if False else 77}, s{sW}, 1\ns_add_u32 s77, s77, {hb}\ns_cmp_eq_u32 s77, s{sGrp}\ns_cselect_b32 s77, {OOB}, 0")
        L(f"v_or_b32 v{(vVA, vVB)[hb]}, s77, v{vX}")
    prev_st = seq_items(R, L.l, 700, deps=[fd, prev_st])
    for jj in range(5):
        for sub in range(4):
            e = SG(NST + jj + 1) - 4 + (sub, 3 - sub, 3)[int(OPT.get('snake', 2))] + 7
            fa, ra_ = Pacc(2 * jj, sub); fb_, rb_ = Pacc(2 * jj + 1, sub)
            dep = []
            if fa == "a":
                ta, tb_ = G(2 * sub, 0), G(1 + 2 * sub, 0)
                dep = [R.add(f"v_accvgpr_read_b32 v{ta+r}, a{ra_+r}", earliest=e, prio=0, deps=[y1]) for r in range(4)] + [R.add(f"v_accvgpr_read_b32 v{tb_+r}, a{rb_+r}", earliest=e, prio=0, deps=[y1]) for r in range(4)]
                ra_, rb_ = ta, tb_
            cc = R.chain([f"v_cvt_pk_bf16_f32 v{ra_}, v{ra_}, v{ra_+1}", f"v_cvt_pk_bf16_f32 v{ra_+1}, v{ra_+2}, v{ra_+3}",
                          f"v_cvt_pk_bf16_f32 v{ra_+2}, v{rb_}, v{rb_+1}", f"v_cvt_pk_bf16_f32 v{ra_+3}, v{rb_+2}, v{rb_+3}"], earliest=e, deps=dep, prio=0)
            pq[(jj, sub)] = ra_
            prev_st = R.add(f"buffer_store_dwordx4 {q('v', ra_)}, v{(vVA, vVB)[sub >> 1]}, {WSR}, s{sOo} offen sc1", earliest=e + int(OPT.get("ssp", 12)) * sub, prio=0, deps=[cc[-1], prev_st])
            prev_st = R.add(f"s_add_u32 s{sOo}, s{sOo}, 1024", earliest=0, prio=0, deps=[prev_st])
        if jj < int(OPT.get('nfl', 2)):
            stl[jj] = R.chain([pflag(jj)[0], f"s_waitcnt vmcnt(@)", pflag(jj)[1]], earliest=min(e + int(OPT.get("ssp", 12)) * 3 + FD_, NG - 6), prio=-5, deps=[prev_st])
    PQ = [[hole(8 + i) for i in range(8)]] * 3
    TQ = [hole(i) for i in range(8)]
    SQ = [TQ[4]] * 3
    sIss, sNew, sProc = 68, 69, sB
    ppoll = f"buffer_load_dword v23, v{vGB}, {WSR}, s{sTo} offen sc1"
    newmask = [f"v_sub_u32 v{vTb[3]}, v23, v{vKB}", f"v_cmp_ge_u32 vcc, 4, v{vTb[3]}", (f"s_and_b32 s{sNew}, vcc_lo, 0xffffff" if "a" not in FAKE else f"s_mov_b32 s{sNew}, 0xffffff"), f"s_andn2_b32 s{sNew}, s{sNew}, s{sIss}", f"s_or_b32 s{sIss}, s{sIss}, s{sNew}"]
    def cond_dma(bit):
        r = bit >> 3
        src = f"s_add_u32 s{sTmp}, s{sPo[0]}, {bit*PST_}" if r == 0 else (f"s_add_u32 s{sTmp}, s{sPo[2]}, {(bit&7)*PST_}" if r == 2 else f"s_add_u32 s{sTmp}, s{sPo[0]}, s{sPo[1]}\ns_add_u32 s{sTmp}, s{sTmp}, {bit*PST_}")
        return [f"s_add_u32 m0, s{sGs}, {bit*1024}", src, f"s_bitcmp1_b32 s{sNew}, {bit}\ns_cselect_b32 s{sTmp}, s{sTmp}, 0x70000000\ns_cselect_b32 m0, m0, 0x30000",
                f"buffer_load_dwordx4 v{vX}, {WSR}, s{sTmp} offen sc1 lds"]
    Sv = lambda e: TQ[e >> 2] + (e & 3); Tv = lambda e: TQ[2 + (e >> 2)] + (e & 3)
    def phaseS(L, r, pk):
        for g in range(8):
            if g == 0:
                for g2 in range(8): L(f"ds_read_b128 {q('v', PQ[r][g2])}, v{vKA} offset:{(8*r+g2)*1024}")
            L(f"s_waitcnt lgkmcnt({7-g})")
            for i in range(4):
                src = PQ[r][g] + i
                if g == 0: L(f"v_lshlrev_b32 v{Sv(2*i)}, 16, v{src}\nv_and_b32 v{Sv(2*i+1)}, 0xffff0000, v{src}")
                else:
                    L(f"v_lshlrev_b32 v{Tv(2*i)}, 16, v{src}\nv_and_b32 v{Tv(2*i+1)}, 0xffff0000, v{src}")
                    if pk: L(f"v_pk_add_f32 {P(Sv(2*i))}, {P(Sv(2*i))}, {P(Tv(2*i))}")
                    else: L(f"v_add_f32 v{Sv(2*i)}, v{Sv(2*i)}, v{Tv(2*i)}\nv_add_f32 v{Sv(2*i+1)}, v{Sv(2*i+1)}, v{Tv(2*i+1)}")
        for i in range(4): L(f"v_cvt_pk_bf16_f32 v{SQ[r]+i}, v{Sv(2*i)}, v{Sv(2*i+1)}")
        L(f"s_nop 1\nv_permlane16_swap_b32 v{SQ[r]}, v{SQ[r]+2}\nv_permlane16_swap_b32 v{SQ[r]+1}, v{SQ[r]+3}")
    def phaseO(L, r, pk, store=True):
        o = TQ[5 + r]
        for i in range(4):
            a, b, t, u = Sv(2 * i), Sv(2 * i + 1), Tv(2 * i), Tv(2 * i + 1); gq = G(13 + r, i); x = G(10 + r, i)
            L(f"v_lshlrev_b32 v{a}, 16, v{SQ[r]+i}\nv_and_b32 v{b}, 0xffff0000, v{SQ[r]+i}\nv_lshlrev_b32 v{t}, 16, v{gq}\nv_and_b32 v{u}, 0xffff0000, v{gq}")
            L(f"v_pk_mul_f32 {P(a)}, {P(a)}, {P(t)}" if pk else f"v_mul_f32 v{a}, v{a}, v{t}\nv_mul_f32 v{b}, v{b}, v{u}")
            L(f"v_cvt_pk_bf16_f32 v{t}, v{a}, v{b}\nv_lshlrev_b32 v{a}, 16, v{t}\nv_and_b32 v{b}, 0xffff0000, v{t}\nv_lshlrev_b32 v{t}, 16, v{x}\nv_and_b32 v{u}, 0xffff0000, v{x}")
            L(f"v_pk_add_f32 {P(a)}, {P(a)}, {P(t)}" if pk else f"v_add_f32 v{a}, v{a}, v{t}\nv_add_f32 v{b}, v{b}, v{u}")
            L(f"v_cvt_pk_bf16_f32 v{o+i}, v{a}, v{b}")
        if store: L(f"buffer_store_dwordx4 {q('v', o)}, v{vXo}, s[{sF2}:{sF2+3}], s{sXc[r]} offen {OPT.get('outst', 'sc1')}")
    ne = lambda r: f"v_cmp_ne_u32 vcc, s{sTag}, v{r}"
    SA = [G(18), G(19)]; st0, st1, st2 = G(20, 0), G(20, 1), G(20, 2)
    L = Lines()
    L(f"v_bfe_u32 v{st0}, v{vL}, 3, 1\nv_lshlrev_b32 v{st0}, 1, v{st0}\nv_lshrrev_b32 v{st1}, 4, v{vL}\nv_sub_u32 v{st0}, v{st1}, v{st0}")
    L(f"v_and_b32 v{st1}, 1, v{vL}\nv_lshlrev_b32 v{st1}, 4, v{st1}\nv_mov_b32 v{st2}, 0x3f80\nv_lshlrev_b32 v{st1}, v{st1}, v{st2}")
    L(f"v_bfe_u32 v{st2}, v{vL}, 1, 2\nv_lshl_add_u32 v{st2}, v{st0}, 2, v{st2}")
    for b_ in range(2):
        for i in range(4): L(f"v_cmp_eq_u32 s[10:11], {4*b_+i}, v{st2}\ns_nop 1\nv_cndmask_b32 v{SA[b_]+i}, 0, v{st1}, s[10:11]")
    L.l.append(f"s_add_u32 s10, s{pWS}, s{sTo}\ns_addc_u32 s11, s{pWS+1}, 0")
    spb = seq_items(R, L.l, 900, deps=[convdone, chk[5], fx, y1] + oprev[3] + clast)
    G0 = max(int(OPT.get("g0", 950)), SG(NST + 3))
    e1 = R.add(ppoll + " ; @issue EP0", earliest=G0 - 40, deps=[fx, yf], prio=-3)
    e2 = seq_items(R, ["s_waitcnt vmcnt(@) ; @need EP0"] + newmask, G0, deps=[e1, hd], prio=-3)
    for bit in range(int(OPT.get("nin", 8))):
        c = cond_dma(bit)
        e2 = R.chain(c[:3], earliest=G0, deps=[e2] + clast, prio=-3)[-1]
        e2 = R.add(c[3], earliest=G0 + int(OPT.get('psp', 3)) * bit, deps=[(e2, 1)], prio=-3)
    e2 = R.add(f"s_and_b32 s{sNew}, s{sNew}, {0xffffff & ~((1 << int(OPT.get('nin', 8))) - 1)}\ns_andn2_b32 s{sIss}, s{sIss}, s{sNew}", earliest=G0, deps=[e2], prio=-3)
    SP = int(OPT.get("sp", 0)); SPD = [12, 13, 14, 15, 28, 29, 30, 31]
    if SP:
        for g in range(8): e2 = R.add(f"s_load_dword s{SPD[g]}, s[10:11], {512*g} glc", earliest=NG - int(OPT.get("g1s", 13)), deps=[e2, spb], prio=-3)
    else: R.add(ppoll + " ; @issue EP1", earliest=NG - int(OPT.get("g1", 20)), deps=[e2], prio=-3)
    L = Lines(); code_touch(L, "post_code", vTb[2], "a216", 1, "ct5")
    t1 = seq_items(R, [f"v_and_b32 v{vTb[2]}, 15, v{vL}", f"v_lshl_add_u32 v{vTb[2]}, s{sW}, 4, v{vTb[2]}", f"v_lshlrev_b32 v{vTb[2]}, 6, v{vTb[2]}"], 800, deps=[chk[5]])
    if int(OPT.get("pct", 1)): R.add("\n".join(L.l).replace(f"s[{sPC}:{sPC+1}]", "s[8:9]").replace(f"s{sPC+1}", "s9").replace(f"s{sPC}", "s8"), earliest=int(OPT.get("pctg", 850)), deps=[t1] + oprev[1] + oprev[2], kind="M")
    if OPT.get("fine"):
        for g in [48] + [SG(x) for x in range(0, NST + 5)]: R.fix(g, ".stamp 9", end=True)
    if OPT.get("grid") == "1":
        for g in range(96 + 1, NG, 16): R.fix(g, ".stamp 55", end=True)
    R.fix(NG - int(OPT.get("rtg", 8)), ".rt", end=True)
    R.tailnop = 7
    R.emit(k, verbose)
    k(".stamp 7")
    k("post_code:")
    if "p" in FAKE: k("s_branch ev_done")
    if OPT.get("grid") == "3": k(".stamp 55")
    TK = "s_waitcnt lgkmcnt(0)\n.stamp 55\n" if OPT.get("grid") == "3" else ""
    isRt = f"s_cmp_lg_u64 s[{sSl}:{sSl+1}], 0" if "r" not in FAKE else "s_cmp_lg_u32 0, 0"
    def dyn_issue(tag, m):
        k(f"s_cmp_eq_u32 s{m}, 0\ns_cbranch_scc1 {tag}_issued\n{tag}_iss:")
        k(f"s_ff1_i32_b32 s{sTmp}, s{m}\ns_bitset0_b32 s{m}, s{sTmp}\ns_lshr_b32 s{sTmp2}, s{sTmp}, 3\ns_mul_i32 s{sTmp2}, s{sTmp2}, s{sPo[1]}\ns_lshl_b32 s{sKs}, s{sTmp}, 10\ns_add_u32 m0, s{sGs}, s{sKs}\ns_mul_i32 s{sTmp}, s{sTmp}, {PST_}")
        k(f"s_add_u32 s{sTmp}, s{sTmp}, s{sTmp2}\ns_add_u32 s{sTmp}, s{sTmp}, s{sPo[0]}\nbuffer_load_dwordx4 v{vX}, {WSR}, s{sTmp} offen sc1 lds\ns_cmp_lg_u32 s{m}, 0\ns_cbranch_scc1 {tag}_iss\n{tag}_issued:")
    k(f"s_cmp_ge_u32 s{sW}, 2\ns_cselect_b32 s{sProc}, 0, 0xff00\ns_mov_b32 s{sIt}, 1\ns_andn2_b32 s{sOo}, s{sIss}, s{sProc}")
    k(f"s_waitcnt vmcnt(@) ; @need PS3|EP1\n" + "\n".join(pflag(3) + pflag(4)[:1]))
    if SP:
        k("s_waitcnt lgkmcnt(0)")
        for g in range(8):
            for r in range(3): k(f"v_writelane_b32 v23, s{SPD[g]}, {8*r+g}")
    for l in newmask: k(l)
    k(f"{isRt}\ns_cbranch_scc1 routed_a")
    k(TK + f"s_and_b32 s8, s{sNew}, {OPT.get('m1', '0xff00ff')}\ns_andn2_b32 s{sNew}, s{sNew}, s8\ns_bcnt1_i32_b32 s9, s8")
    dyn_issue("e0", 8)
    srd_off(k, sF2, pOUT, None, 2621440)
    k(TK + f"s_lshr_b32 s{sTmp}, s{sGrp}, 1\ns_cmp_eq_u32 s{sTmp}, s{sW}\ns_cbranch_scc0 own_share_ret")
    k(f"s_lshl_b32 s{sTmp}, s{sGrp}, 10\nv_add_u32 v8, s{sTmp}, v{vX}")
    for cw in (3, 2, 1, 0): k(f"v_add_u32 v{8+cw}, {ZONES[cw]*SLOT}, v8")
    k(f"s_bitcmp1_b32 s{sGrp}, 0\ns_cbranch_scc1 own_odd")
    for hb in range(2):
        if hb: k("own_odd:")
        for jj in (4, 3, 2, 1, 0):
            for sb in range(2):
                cw = sb + (2 if jj in (1, 2, 3) else 0); r = (0, 0, 1, 2, 2)[jj]
                k(f"ds_write_b128 v{8+cw}, {q('v', pq[(jj, 2*hb+sb)])} offset:{8*r*1024}")
        if not hb: k("s_branch own_share_ret")
    k("own_share_ret:")
    for n_ in [26] + list(range(14, 0, -1)): k(f"s_cmp_ge_u32 s9, {n_}\ns_waitcnt vmcnt({n_+1})\ns_cbranch_scc1 w4_done")
    k(f"s_waitcnt vmcnt(1)\nw4_done:\n{pflag(4)[1]}")
    k(".stamp 7")
    k(TK + f"s_cmp_lg_u32 s9, 26\ns_cbranch_scc1 ev_first\ns_waitcnt vmcnt(1)\ns_branch ev_first")
    k("ev_loop:")
    k(f"s_cmp_ge_u32 s9, 2\ns_waitcnt vmcnt(2)\ns_cbranch_scc1 ev_w\ns_cmp_eq_u32 s9, 1\ns_waitcnt vmcnt(1)\ns_cbranch_scc1 ev_w\ns_waitcnt vmcnt(0)\nev_w:")
    k(TK + f"s_andn2_b32 s{sOo}, s{sIss}, s{sProc}")
    for l in newmask: k(l)
    k("ev_first:")
    dyn_issue("ev", sNew)
    k(f"s_mov_b32 s9, 0\ns_cmp_eq_u32 s{sIss}, 0xffffff\ns_cbranch_scc1 ev_nopoll\ns_xor_b32 exec_lo, s{sIss}, 0xffffff\ns_mov_b32 exec_hi, 0\n{ppoll}\ns_mov_b64 exec, -1\nev_nopoll:")
    k(f"s_cmp_eq_u32 s{sIt}, 0\ns_cbranch_scc1 ev_sel\ns_mov_b32 s{sIt}, 0\ns_waitcnt lgkmcnt(0)\n{TK}s_barrier\n{TK}{isRt}\ns_cbranch_scc1 routed\nrouted_ret:")
    Gu = lambda e: TQ[2 + (e >> 2)] + (e & 3); Xu = lambda e: TQ[4 + (e >> 2)] + (e & 3)
    k("ev_sel:")
    for r in range(3):
        k(f"s_bfe_u32 s{sTmp}, s{sOo}, {0x80000 | (8*r)}\ns_cmp_eq_u32 s{sTmp}, 0xff\ns_cbranch_scc0 ev_r{r}\ns_or_b32 s{sProc}, s{sProc}, {0xff << (8*r)}\ns_andn2_b32 s{sOo}, s{sOo}, {0xff << (8*r)}")
        k(f"s_mov_b32 s{sKo}, s{sXc[r]}")
        for g2 in range(8): k(f"ds_read_b128 {q('v', PQ[0][g2])}, v{vKA} offset:{(8*r+g2)*1024}")
        for i in range(4):
            k(f"v_lshlrev_b32 v{Gu(2*i)}, 16, v{G(13+r, i)}\nv_and_b32 v{Gu(2*i+1)}, 0xffff0000, v{G(13+r, i)}\nv_lshlrev_b32 v{Xu(2*i)}, 16, v{G(10+r, i)}\nv_and_b32 v{Xu(2*i+1)}, 0xffff0000, v{G(10+r, i)}")
        k(f"s_branch ev_go\nev_r{r}:")
    k(f"s_cmp_eq_u32 s{sProc}, 0xffffff\ns_cbranch_scc1 ev_done\ns_add_u32 s{sSpin}, s{sSpin}, 1\ns_cmp_gt_u32 s{sSpin}, 0x2000000\ns_cbranch_scc0 ev_loop\ns_branch ev_done")
    k("ev_go:")
    for g2 in range(8):
        k(f"s_waitcnt lgkmcnt({7-g2})")
        for b_ in range(2): k(f"{MF} {q('v', TQ[b_])}, {q('v', SA[b_])}, {q('v', PQ[0][g2])}, {'0' if g2 == 0 else q('v', TQ[b_])}")
    k("s_nop 6")
    o = TQ[7]; t = TQ[6]
    for i in range(4): k(f"v_cvt_pk_bf16_f32 v{t+i}, v{Sv(2*i)}, v{Sv(2*i+1)}")
    for i in range(4): k(f"v_lshlrev_b32 v{Sv(2*i)}, 16, v{t+i}\nv_and_b32 v{Sv(2*i+1)}, 0xffff0000, v{t+i}")
    for i in range(4): k(f"v_pk_mul_f32 {P(Sv(2*i))}, {P(Sv(2*i))}, {P(Gu(2*i))}")
    for i in range(4): k(f"v_cvt_pk_bf16_f32 v{t+i}, v{Sv(2*i)}, v{Sv(2*i+1)}")
    for i in range(4): k(f"v_lshlrev_b32 v{Sv(2*i)}, 16, v{t+i}\nv_and_b32 v{Sv(2*i+1)}, 0xffff0000, v{t+i}")
    for i in range(4): k(f"v_pk_add_f32 {P(Sv(2*i))}, {P(Sv(2*i))}, {P(Xu(2*i))}")
    for i in range(4): k(f"v_cvt_pk_bf16_f32 v{o+i}, v{Sv(2*i)}, v{Sv(2*i+1)}")
    k(f"buffer_store_dwordx4 {q('v', o)}, v{vXo}, s[{sF2}:{sF2+3}], s{sKo} offen {OPT.get('outst', 'sc1')}")
    k(f"s_add_u32 s9, s9, 1\ns_cmp_lg_u32 s{sProc}, 0xffffff\ns_cbranch_scc1 ev_sel\nev_done:")
    k(f"s_or_b32 s{sTmp}, s2, s{sW}\ns_cmp_eq_u32 s{sTmp}, 0\ns_cselect_b32 s{sTmp}, 0, {OOB}\ns_add_u32 s{sTmp}, s{sTmp}, {EPOCH}\nbuffer_store_dword v{vTagV}, v{vZero}, {WSR}, s{sTmp} offen")
    k(".stamp 7")
    k(f"{name}_fin:")
    k(f"{name}_end:\ns_endpgm")
    for i in range(6):
        k(f"spin_o{i}:\n{osl}\ns_add_u32 s{sSpin}, s{sSpin}, 1\ns_cmp_gt_u32 s{sSpin}, 0x2000000\ns_waitcnt lgkmcnt(0)\ns_cbranch_scc1 spin_o{i}_ret")
        for l in ocheck(i): k(l)
        k(f"s_cmp_gt_u32 s88, {5-i}\ns_cbranch_scc1 spin_o{i}\ns_branch spin_o{i}_ret")
    Y = 48; RS = 2; YA = 6; FV = 7; XX = 12; ST = 26; T1 = 18; T2 = 19; XN_ = 56
    ycond = f"v_xor_b32 v{YV+1}, s{sTag}, v{YV+1}\nv_xor_b32 v{YV+2}, s{sTag}, v{YV+2}\nv_xor_b32 v{YV+3}, s{sTag}, v{YV+3}\nv_or3_b32 v{YV+1}, v{YV+1}, v{YV+2}, v{YV+3}\nv_cmp_ne_u32 vcc, 0, v{YV+1}"
    k("routed_a:"); k(ycond); k(f"s_cbranch_vccz spin_y_ret\ns_waitcnt vmcnt(0)\n{pflag(4)[1]}\ns_branch spin_y\nspin_y_ret:")
    k(f"v_cmp_lt_u32 vcc, 31, v{vL}\nv_mov_b32 v{RS}, s{sI0}\nv_mov_b32 v{YA}, s{sI1}\nv_cndmask_b32 v{RS}, v{RS}, v{YA}, vcc")
    k(f"v_bfe_u32 v{T1}, v{vL}, 3, 2\nv_mov_b32 v{YA}, s{sXc[0]}\nv_mov_b32 v{T2}, s{sXc[1]}\nv_cmp_eq_u32 vcc, 1, v{T1}\ns_nop 1\nv_cndmask_b32 v{YA}, v{YA}, v{T2}, vcc")
    k(f"v_mov_b32 v{T2}, s{sXc[2]}\nv_cmp_lt_u32 vcc, 1, v{T1}\ns_nop 1\nv_cndmask_b32 v{YA}, v{YA}, v{T2}, vcc\nv_and_b32 v{T2}, 7, v{vL}\nv_lshl_add_u32 v{YA}, v{T2}, 3, v{YA}")
    k(f"v_and_b32 v{T1}, 0x7ff, v{RS}\nv_sub_u32 v{T1}, 2047, v{T1}\nv_mul_u32_u24 v{T2}, 1280, v{T1}\nv_add_u32 v{T2}, v{T2}, v{YA}\nv_lshlrev_b32 v{T1}, 3, v{T1}\ns_mov_b32 s{sTmp2}, {STATS}")
    k(f"buffer_load_dwordx2 v[{XX}:{XX+1}], v{T2}, s[{sV}:{sV+3}], 0 offen\nbuffer_load_dwordx2 v[{ST}:{ST+1}], v{T1}, {WSR}, s{sTmp2} offen sc1")
    k(f"v_lshrrev_b32 v{T1}, 5, v{vL}\nv_mul_u32_u24 v{T1}, 2560, v{T1}\nv_lshl_add_u32 v{YA}, v{YA}, 1, v{T1}\ns_mov_b32 s{sTmp}, {YP}")
    YQ = [G(i) for i in (1, 3, 5, 7, 9, 16, 17, 20, 21, 22, 23)] + [hole(b_ + i) for b_ in (4, 12, 20) for i in range(4)] + [60]
    for c in range(24): k(f"buffer_load_dwordx4 {q('v', YQ[c])}, v{YA}, {WSR}, s{sTmp} offen sc1\ns_add_u32 s{sTmp}, s{sTmp}, 5120")
    k(f"s_mov_b32 s9, 26\ns_branch e0_issued\nrouted:")
    k(f"v_and_b32 v{RS}, 0xffff0000, v{RS}\nv_ashrrev_i32 v{T1}, 31, v{RS}\nv_not_b32 v{T1}, v{T1}\nv_or_b32 v{T1}, 0x80000000, v{T1}\nv_xor_b32 v{RS}, v{RS}, v{T1}\nv_and_b32 v{RS}, 0xffff0000, v{RS}")
    k(f"v_mul_f32 v{RS}, s{sNL}, v{RS}\nv_exp_f32 v{RS}, v{RS}\ns_nop 0\nv_add_f32 v{RS}, 1.0, v{RS}\nv_rcp_f32 v{RS}, v{RS}\ns_nop 0")
    round_bf16(k, RS, RS)
    for i in range(2): k(f"v_lshlrev_b32 v{XN_+2*i}, 16, v{XX+i}\nv_and_b32 v{XN_+2*i+1}, 0xffff0000, v{XX+i}")
    for e in range(4):
        k(f"v_sub_f32 v{XN_+e}, v{XN_+e}, v{ST}"); round_bf16(k, XN_ + e, XN_ + e); k(f"v_mul_f32 v{XN_+e}, v{XN_+e}, v{ST+1}"); round_bf16(k, XN_ + e, XN_ + e)
    k(f"s_lshl_b32 s{sTmp}, s{sW}, 9\ns_add_u32 s{sTmp}, s{sTmp}, {SPARE + 12288}\nv_lshlrev_b32 v{T1}, 3, v{vL}\nv_add_u32 v{T1}, s{sTmp}, v{T1}")
    k(f"v_mov_b32 v{FV}, 256\nv_cndmask_b32 v{T2}, 0, v{FV}, s[{sM1}:{sM1+1}]\nv_lshl_add_u32 v{T2}, v{vSig}, 4, v{T2}\nv_add_u32 v{T2}, s{sTmp}, v{T2}")
    k(f"v_pk_add_f32 {P(Y)}, {P(YQ[0])}, {P(YQ[1])}\nv_pk_add_f32 {P(Y+2)}, {P(YQ[0]+2)}, {P(YQ[1]+2)}")
    for c in range(2, 24): k(f"v_pk_add_f32 {P(Y)}, {P(Y)}, {P(YQ[c])}\nv_pk_add_f32 {P(Y+2)}, {P(Y+2)}, {P(YQ[c]+2)}")
    for e in range(4):
        y = Y + e; u = Y + 4 + e
        round_bf16(k, y, y); k(f"v_mul_f32 v{y}, v{y}, v{RS}"); round_bf16(k, y, y); k(f"v_add_f32 v{y}, v{y}, v{XN_+e}"); round_bf16(k, y, y)
        k(f"v_mul_f32 v{u}, s{sNL}, v{y}\nv_exp_f32 v{u}, v{u}\ns_nop 0\nv_add_f32 v{u}, 1.0, v{u}\nv_rcp_f32 v{u}, v{u}\ns_nop 0\nv_mul_f32 v{y}, v{y}, v{u}")
    k(f"v_cvt_pk_bf16_f32 v{Y}, v{Y}, v{Y+1}\nv_cvt_pk_bf16_f32 v{Y+1}, v{Y+2}, v{Y+3}\nds_write_b64 v{T1}, {P(Y)}\ns_mov_b64 exec, s[{sSl}:{sSl+1}]")
    for r in range(3): k(f"ds_read_b128 {q('v', G(13+r))}, v{T2} offset:{64*r}")
    k(f"s_waitcnt lgkmcnt(0)\ns_mov_b64 exec, -1\ns_mov_b64 s[{sSl}:{sSl+1}], 0\ns_branch routed_ret")
    spin_code(k, "spin_y", "\n".join(ypoll), ycond, "spin_y_ret")
    spin_code(k, "spin_rec", "\n".join(recl), reccond, "spin_rec_ret")
    spin_code(k, "spin_gu", gpoll, ne(61), "spin_gu_ret")
    rare_path(k, "rare_p", 0, 1); rare_path(k, "rare_a", 1, 0); rare_path(k, "rare_b", 0, 1); rare_path(k, "rare_e", 1, 0, has_other=False)
    if OPT.get("grid"): k.lines = [l for l in k.lines if not l.strip().startswith(".stamp") or l.strip() == ".stamp 55"]
    return k
```

```python
from common import *
from small import tr_addr, dma_chunk_tr, wrow
from sch2 import Prog, Rg, strip_names
import bisect, math

KB = 1024
SLOT = 24576
SPARE = 6 * SLOT
SM = "v_smfmac_f32_16x16x64_bf16"
OOB = "0x7ffffff0"
BADOFF = "0x70000000"
O = lambda n, d: type(d)(OPT.get(n, d))
SPB = lambda: OPT.get("spin", "0x2000000")

vL = Rg(1, "L")
vGA, vGB = Rg(2, "GA"), Rg(3, "GB"); vWoX, vWoY = Rg(2, "WoX"), Rg(3, "WoY")
vKA, vKB = Rg(4, "KA"), Rg(5, "KB"); vVA = Rg(6, "VA"); vCT = Rg(7, "CT"); vWoH = Rg(7, "WoH"); vWR = Rg(5, "WR")
vT = [8, 9, 10, 11]; vK = [12, 13]; vH = [12, 13]
vXa, vXb = Rg(14, "Xa"), Rg(15, "Xb"); vX = Rg(14, "X"); vZ = Rg(15, "Z")
vTid, vRec = Rg(16, "Tid"), Rg(17, "Rec"); vLi = [16, 17, 18, 19]
vIdx = Rg(20, "Idx"); vDl = Rg(19, "Dl")
vC, vC2, vC3 = 29, 30, 31
PQ = [24 + 4 * n for n in range(8)]
def oct_(i, sub): return 64 + (i * 4 + sub) * 8
NPA = 7
def pslot(o): return o + 1 if o < 24 else (0 if o == 24 else o - 24)
def Pv(t, sub): return 56 + 8 * pslot(4 * (t >> 1) + sub) + 4 * (t & 1)
def Pa(t, sub): return 96 + 8 * (4 * (t >> 1) + sub) + 4 * (t & 1)
def Pfin(t, sub): return ("a", Pa(t, sub)) if 4 * (t >> 1) + sub < NPA else ("v", Pv(t, sub))
def Qa(i, sub): return 16 * i + 4 * sub
def acc0(T, sub): return 152 + 16 * T + 4 * sub
def unit(pos, sub): return 96 + (pos * 4 + sub) * 8
aONE = 248; aJ = 252
sW = 3; sFl = Rg(4, "Fl"); sFb = Rg(5, "Fb"); sTo = 6; sTag = 7
sG, sK, sV, sXN, sWS, sF1, sF2 = 8, 12, 16, 20, 24, 28, 32
sGo, sGs, sKo, sKs, sVo = Rg(36, "Go"), Rg(37, "Gs"), Rg(38, "Ko"), 39, Rg(40, "Vo")
sR = [41, 42, 43]; sRt = 44; sIt = Rg(45, "It"); sXo = Rg(46, "Xo"); sM = 47; sRd = 48; sWoff = 49
sHead, sJ, sQt, sGrp, sQ64 = 50, 51, 52, 53, 54
sOo = 55; sTmp = 56; sTmp2 = 57; sJob = Rg(58, "Job"); sA = 59; sB = 60; sFo = 61; sFo2 = 62; sW1k = Rg(63, "W1k")
pX, pK, pV, pWQ, pWO, pWR, pG, pU, pD, pOUT, pWS = 64, 66, 68, 70, 72, 76, 78, 80, 82, 84, 86
sI0, sI1 = Rg(70, "I0"), Rg(71, "I1"); sXid = Rg(76, "Xid"); sNL = Rg(92, "NL"); sSpin = 101
WSR = f"s[{sWS}:{sWS+3}]"
SR = lambda s: f"s[{s}:{s+3}]"

class Lines:
    def __init__(self): self.l = []
    def __call__(self, s): self.l += [x.strip() for x in s.split("\n") if x.strip()]

def xgroup_reduce(k, r, t, op):
    for sw in ("v_permlane16_swap_b32", "v_permlane32_swap_b32"):
        k(f"v_mov_b32 v{t}, v{r}\ns_nop 1\n{sw} v{r}, v{t}\ns_nop 1\n{op} v{r}, v{r}, v{t}")

def dma_lines(srd, so, va, vb, mbase, mconst, tag):
    L = []
    for i in range(6):
        imm = 128 * (i % 3)
        L.append((f"s_add_u32 m0, s{mbase}, {mconst + i*1024 - imm}",
                  f"buffer_load_dwordx4 v{va if i < 3 else vb}, {SR(srd)}, s{so} offen offset:{imm} lds"))
    return L

def spin_code(k, label, load, cond, ret):
    k(f"{label}:\ns_add_u32 s{sSpin}, s{sSpin}, 1\ns_cmp_gt_u32 s{sSpin}, {SPB()}\ns_cbranch_scc1 {label}_x")
    k(load); k("s_waitcnt vmcnt(0)"); k(cond); k(f"s_cbranch_vccnz {label}\n{label}_x:")
    k(f"s_branch {ret}")

XSLOT = {0: 160, 1: 176, 2: 96, 3: 112, 4: 128, 5: 144, 6: 192, 7: 208}
for n_ in range(8, 14): XSLOT[n_] = 16 * (n_ - 8)
for n_ in range(14, 20): XSLOT[n_] = XSLOT[n_ - 14]
def Xreg(n, sub): return q("a", XSLOT[n] + 4 * sub)
def xload(n, so): return [f"buffer_load_dwordx4 {Xreg(n, sub)}, v{(vXa, vXb)[sub >> 1]}, {SR(sXN)}, s{so} offen offset:{(sub & 1)*1024} sc1" for sub in range(4)]
wadv = f"s_add_u32 s{sGo}, s{sGo}, s{sGs}\ns_sub_u32 s{sOo}, s{sGo}, {640*12288}\ns_min_u32 s{sGo}, s{sGo}, s{sOo}"
xoff = lambda n, t: f"s_add_u32 s{sXo}, s{sIt}, {n*4096}\ns_sub_u32 s{t}, s{sXo}, 81920\ns_min_u32 s{sXo}, s{sXo}, s{t}"

def startup(k, name):
    FP = OPT.get("finep")
    k(f"s_cmp_ge_u32 s2, 256\ns_cbranch_scc1 {name}_end")
    k("s_load_dwordx16 s[64:79], s[0:1], 0\ns_load_dwordx4 s[80:83], s[0:1], 64\ns_load_dwordx2 s[84:85], s[0:1], 80\ns_load_dwordx2 s[86:87], s[0:1], 96")
    k(f"s_lshr_b32 s{sTmp}, s2, 3\ns_lshl_b32 s{sTmp}, s{sTmp}, 10\nv_lshrrev_b32 v18, 5, v0\nv_lshlrev_b32 v18, 7, v18\nv_add_u32 v18, s{sTmp}, v18")
    k(f"s_getpc_b64 s[88:89]\ncode0:\nglobal_load_dword a{aJ}, v18, s[88:89]\nv_add_u32 v19, 32768, v18\nglobal_load_dword a{aJ}, v19, s[88:89]\nv_lshrrev_b32 v{vRec}, 6, v0\nv_lshlrev_b32 v{vRec}, 12, v{vRec}\nv_and_b32 v{vL}, 63, v0\nv_lshl_add_u32 v{vRec}, v{vL}, 4, v{vRec}")
    k(f"v_lshrrev_b32 v{vC}, 6, v0\nv_mov_b32 v{vTid}, v0\nv_readfirstlane_b32 s{sW}, v{vC}")
    if FP: k(".stamp 9")
    k(f"s_and_b32 s{sGrp}, s2, 7\ns_lshr_b32 s{sQt}, s2, 5\ns_bfe_u32 s{sJ}, s2, 0x20003\ns_lshl_b32 s{sHead}, s{sGrp}, 2\ns_add_u32 s{sHead}, s{sHead}, s{sJ}")
    LR, LC, LX, LS = 240, 241, 242, 243
    k(f"s_lshl_b32 s{sB}, s2, 3\ns_lshl_b32 s{sTmp}, s{sW}, 1\ns_add_u32 s{sB}, s{sB}, s{sTmp}\nv_bfe_u32 v{LR}, v{vL}, 2, 1\nv_add_u32 v{LR}, s{sB}, v{LR}")
    k(f"v_lshrrev_b32 v{LC}, 3, v{vL}\nv_lshlrev_b32 v{LC}, 6, v{LC}\nv_and_b32 v{vC}, 3, v{vL}\nv_lshl_add_u32 v{LC}, v{vC}, 4, v{LC}")
    k(f"v_mul_u32_u24 v{LX}, 1280, v{LR}\nv_add_u32 v{LX}, v{LX}, v{LC}")
    dma_chunk_tr(k, vCT, vL, vC); wrow(k, vWR, vL, vC)
    k(f"v_mul_u32_u24 v{vGA}, 12288, v{vWR}\nv_add_u32 v{vGA}, v{vGA}, v{vCT}\nv_add_u32 v{vGB}, {16*12288}, v{vGA}")
    k(f"s_lshl_b32 s{sQ64}, s{sQt}, 2\ns_add_u32 s{sQ64}, s{sQ64}, s{sW}\ns_mul_i32 s{sWoff}, s{sW}, 6144")
    k(f"s_lshr_b32 s{sA}, s{sW}, 1\ns_lshl_b32 s{sA}, s{sA}, 5\ns_and_b32 s{sTmp}, s{sW}, 1\ns_lshl_b32 s{sTmp}, s{sTmp}, 2\ns_add_u32 s{sA}, s{sA}, s{sTmp}")
    k(f"s_mul_i32 s{sGo}, s{sA}, 12288\ns_mov_b32 s{sGs}, {64*12288}")
    tbl = {0: 0, 2: 0x5050, 4: 0x7520}[O("rot", 2)]
    k(f"s_add_u32 s{sIt}, s{sJ}, s{sQt}\ns_and_b32 s{sIt}, s{sIt}, 3\ns_lshl_b32 s{sIt}, s{sIt}, 2\ns_lshr_b32 s{sIt}, {tbl:#x}, s{sIt}\ns_and_b32 s{sIt}, s{sIt}, 15")
    k(f"s_mul_i32 s{sTmp}, s{sIt}, {64*12288}\ns_add_u32 s{sGo}, s{sGo}, s{sTmp}\ns_lshl_b32 s{sIt}, s{sIt}, 13")
    k(f"s_mul_i32 s{sTmp}, s{sHead}, 384\ns_sub_u32 s{sTmp2}, 7864320, s{sTmp}")
    k("s_waitcnt lgkmcnt(0)")
    if FP: k(".stamp 9")
    srd_off(k, sK, pX, None, 2621440); srd_off(k, sV, pWR, None, 1280)
    XR, WR, F = 64, 76, 96
    k(f"buffer_load_dwordx4 {q('v',XR)}, v{LX}, {SR(sK)}, 0 offen\nbuffer_load_dwordx4 {q('v',XR+4)}, v{LX}, {SR(sK)}, 0 offen offset:512")
    k(f"buffer_load_dwordx4 {q('v',XR+8)}, v{LX}, {SR(sK)}, 0 offen offset:1024")
    k(f"v_mov_b32 v25, {EPOCH}\nglobal_load_dword v26, v25, s[{pWS}:{pWS+1}] sc1")
    k(f"s_lshr_b32 s{sRt}, s2, 3\ns_lshl_b32 s{sRt}, s{sRt}, 7\ns_add_u32 s{sRt}, s{sRt}, {LNF}\ns_load_dword s28, s[{pWS}:{pWS+1}], s{sRt} glc")
    for i in range(3): k(f"buffer_load_dwordx4 {q('v',WR+4*i)}, v{LC}, {SR(sV)}, 0 offen offset:{512*i}")
    srd_off(k, sG, pWQ, f"s{sTmp}", f"s{sTmp2}")
    W_ALL = O("wall", 4)
    for m, d in dma_lines(sG, sGo, vGA, vGB, sWoff, 2 * SLOT, "W0"): k(m); k("s_nop 0"); k(d)
    k(wadv)
    srd_off(k, sWS, pWS, None, WS_SIZE)
    k(f"v_lshrrev_b32 v{LS}, 6, v{LR}\nv_mul_u32_u24 v{LS}, 81920, v{LS}\nv_bfe_u32 v{vC}, v{LR}, 4, 2\nv_lshl_add_u32 v{LS}, v{vC}, 10, v{LS}\nv_and_b32 v{vC}, 15, v{LR}\nv_lshl_add_u32 v{LS}, v{vC}, 6, v{LS}")
    k(f"v_lshrrev_b32 v{vC}, 3, v{vL}\nv_lshl_add_u32 v{LS}, v{vC}, 12, v{LS}\nv_and_b32 v{vC}, 3, v{vL}\nv_lshl_add_u32 v{LS}, v{vC}, 4, v{LS}")
    k(f"s_mov_b32 s{sKo}, {fbits(1.0/640):#x}\ns_mov_b32 s{sKs}, {fbits(1e-5):#x}\ns_mov_b32 s{sR[0]}, {XNF}\ns_mov_b32 s{sR[1]}, {XNF+32768}\ns_mov_b32 s{sR[2]}, {XNF+65536}")
    tr_addr(k, vT[0], vL, vC, 3072, 0)
    k(f"v_add_u32 v{vT[0]}, {2*SLOT}, v{vT[0]}")
    for qd in range(1, 4): k(f"v_xor_b32 v{vT[qd]}, {qd*32}, v{vT[0]}")
    k(f"v_and_b32 v{vXb}, 15, v{vL}\nv_lshlrev_b32 v{vXb}, 6, v{vXb}\nv_lshrrev_b32 v{vC}, 4, v{vL}\nv_lshl_add_u32 v{vXb}, v{vC}, 4, v{vXb}")
    k(f"s_and_b32 s{sTmp}, s2, 1\ns_lshl_b32 s{sTmp}, s{sTmp}, 11\nv_add_u32 v{vXb}, s{sTmp}, v{vXb}\nv_xor_b32 v{vXa}, 2048, v{vXb}")
    k(f"s_mul_i32 s{sTmp}, s{sQ64}, 81920\ns_add_u32 s{sTmp}, s{sTmp}, {XNF}")
    srd_off(k, sXN, pWS, f"s{sTmp}", 81920)
    k(f"s_lshl_b32 s{sXo}, s{sQ64}, 7\ns_add_u32 s{sXo}, s{sXo}, {LNF}\ns_mov_b32 s{sSpin}, 0")
    k(f"s_lshl_b32 s{sTmp}, s{sGrp}, 12\ns_add_u32 s{sXo}, s{sXo}, s{sTmp}\ns_load_dword s31, s[{pWS}:{pWS+1}], s{sXo} glc")
    k(f"s_lshr_b32 s{sTo}, s2, 3\ns_lshl_b32 s{sTo}, s{sTo}, 7\ns_lshl_b32 s{sTmp}, s{sGrp}, 2\ns_add_u32 s{sTo}, s{sTo}, s{sTmp}\ns_add_u32 s{sTo}, s{sTo}, {LNF}\ns_cmp_eq_u32 s{sW}, 0\ns_cselect_b32 s{sTo}, s{sTo}, {BADOFF}\nv_lshlrev_b32 v20, 12, v{vL}")
    if FP: k(".stamp 9")
    k("s_waitcnt vmcnt(@)")
    if FP: k(".stamp 9")
    LO = "s_mov_b32 exec_hi, 0"; ALL = "s_mov_b64 exec, -1"
    A0, A1, T0 = 120, 122, 124
    def red(r):
        for st in ("quad_perm:[1,0,3,2]", "quad_perm:[2,3,0,1]", "row_ror:8"):
            k(f"s_nop 1\nv_add_f32_dpp v{r}, v{r}, v{r} {st} row_mask:0xf bank_mask:0xf")
        xgroup_reduce(k, r, T0, "v_add_f32")
    P = lambda r: f"v[{r}:{r+1}]"
    for i in range(12): k(f"v_lshlrev_b32 v{F+2*i}, 16, v{XR+i}\nv_and_b32 v{F+2*i+1}, 0xffff0000, v{XR+i}")
    k(f"v_pk_add_f32 {P(A0)}, {P(F)}, {P(F+2)}\nv_pk_add_f32 {P(A1)}, {P(F+4)}, {P(F+6)}")
    for i in range(4, 12):
        if i == 8: k(LO)
        a = (A0, A1)[i % 2]; k(f"v_pk_add_f32 {P(a)}, {P(a)}, {P(F+2*i)}")
    k(ALL); k(f"v_pk_add_f32 {P(A0)}, {P(A0)}, {P(A1)}\nv_add_f32 v{A0}, v{A0}, v{A0+1}")
    red(A0)
    MN, NM_, VR = 126, 128, 130
    k(f"v_mul_f32 v{MN}, s{sKo}, v{A0}\nv_mul_f32 v{NM_}, s{sKo}, -v{A0}\nv_mul_f32 v{NM_+1}, s{sKo}, -v{A0}")
    for i in range(12):
        if i == 8: k(LO)
        a = (A0, A1)[i % 2]; t = 132 + 2 * (i % 4)
        k(f"v_pk_add_f32 {P(t)}, {P(F+2*i)}, {P(NM_)}")
        k(f"v_pk_mul_f32 {P(a)}, {P(t)}, {P(t)}" if i < 2 else f"v_pk_fma_f32 {P(a)}, {P(t)}, {P(t)}, {P(a)}")
    k(ALL); k(f"v_pk_add_f32 {P(A0)}, {P(A0)}, {P(A1)}\nv_add_f32 v{A0}, v{A0}, v{A0+1}")
    red(A0)
    k(f"v_mul_f32 v{VR}, s{sKo}, v{A0}")
    round_bf16(k, MN, MN); round_bf16(k, VR, VR)
    k(f"v_add_f32 v{VR}, s{sKs}, v{VR}"); round_bf16(k, VR, VR)
    k(f"v_sqrt_f32 v{VR}, v{VR}\nv_sub_f32 v{NM_}, 0, v{MN}"); round_bf16(k, VR, VR)
    k(f"v_rcp_f32 v{MN+1}, v{VR}\nv_sub_f32 v{NM_+1}, 0, v{MN}")
    k(f"v_mul_f32 v{A0}, {fbits(CSC):#x}, v{MN+1}\nv_mul_f32 v{A0+1}, {fbits(CSC):#x}, v{MN+1}\nv_mov_b32 v{VR}, v{MN+1}\nv_mov_b32 v{VR+1}, v{MN+1}")
    XS = 144
    for i in range(12):
        t = 132 + 2 * (i % 4)
        k(f"v_pk_add_f32 {P(F+2*i)}, {P(F+2*i)}, {P(NM_)}\nv_pk_mul_f32 {P(t)}, {P(F+2*i)}, {P(A0)}\nv_cvt_pk_bf16_f32 v{XS+i}, v{t}, v{t+1}")
        if i == 11: k(LO)
        if i % 4 == 3: k(f"buffer_store_dwordx4 {q('v',XS+i-3)}, v{LS}, {WSR}, s{sR[i//4]} offen sc1")
    k(ALL)
    if O("warmat", 0) == 0: k(".warm")
    if FP: k(".stamp 9")
    k("s_waitcnt vmcnt(@)")
    k(f"v_readfirstlane_b32 s{sTag}, v26")
    D = []
    for p in range(1, W_ALL):
        D += [list(x) for x in dma_lines(sG, sGo, vGA, vGB, sWoff, ((p + 2) % 6) * SLOT, f"W{p}")]; D[-1].append(wadv)
    def dma_pop(n=1):
        for _ in range(n):
            if D:
                d = D.pop(0); k(d[0]); k("s_nop 0"); [k(x) for x in d[1:]]
    for i in range(12):
        if i == 8: k(LO)
        f = F + 2 * i; t = 132 + 2 * (i % 4); a = (A0, A1)[i % 2]
        k(f"v_cvt_pk_bf16_f32 v{XR+i}, v{f}, v{f+1}\nv_lshlrev_b32 v{f}, 16, v{XR+i}\nv_and_b32 v{f+1}, 0xffff0000, v{XR+i}\nv_pk_mul_f32 {P(f)}, {P(f)}, {P(VR)}")
        k(f"v_cvt_pk_bf16_f32 v{XR+i}, v{f}, v{f+1}\nv_lshlrev_b32 v{f}, 16, v{XR+i}\nv_and_b32 v{f+1}, 0xffff0000, v{XR+i}")
        k(f"v_lshlrev_b32 v{t}, 16, v{WR+i}\nv_and_b32 v{t+1}, 0xffff0000, v{WR+i}")
        k(f"v_pk_mul_f32 {P(a)}, {P(f)}, {P(t)}" if i < 2 else f"v_pk_fma_f32 {P(a)}, {P(f)}, {P(t)}, {P(a)}")
        if i < 8: dma_pop(2)
        if i == O("pgi", 8): k("s_branch page0\n.p2align 12\npage0:")
        if i == 4:
            k(f"s_waitcnt vmcnt(@) lgkmcnt(0)\ns_lshr_b32 s{sTag}, s{sTag}, 4\ns_mul_i32 s{sTag}, s{sTag}, 0x2c9277b5\ns_add_u32 s{sTag}, s{sTag}, 0x6c564b05\ns_lshl_b32 s{sTag}, s{sTag}, 4\ns_barrier\nv_mov_b32 v21, s{sTag}\ns_mov_b64 exec, 0xff\nbuffer_store_dword v21, v20, {WSR}, s{sTo} offen sc1\ns_mov_b64 exec, 0x11\nv_lshlrev_b32 v{vC}, 3, v{LR}\ns_mov_b32 s{sTmp}, {STATS}\nbuffer_store_dwordx2 {P(MN)}, v{vC}, {WSR}, s{sTmp} offen sc1\n{ALL}")
    k(ALL); k(f"v_pk_add_f32 {P(A0)}, {P(A0)}, {P(A1)}\nv_add_f32 v{A0}, v{A0}, v{A0+1}")
    red(A0)
    round_bf16(k, A0, A0)
    k(f"v_ashrrev_i32 v{A1}, 31, v{A0}\nv_or_b32 v{A1}, 0x80000000, v{A1}\nv_xor_b32 v{A0}, v{A0}, v{A1}\nv_and_b32 v{A0}, 0xffff0000, v{A0}\nv_sub_u32 v{A1}, 2047, v{LR}\nv_or_b32 v{A0}, v{A0}, v{A1}")
    k(f"s_nop 1\nv_mov_b32_dpp v{A0+1}, v{A0} row_ror:4 row_mask:0xf bank_mask:0xf\nv_mov_b32 v{A0+2}, s{sTag}\nv_mov_b32 v{A0+3}, s{sTag}")
    k(f"s_lshl_b32 s{sTmp}, s2, 2\ns_add_u32 s{sTmp}, s{sTmp}, s{sW}\ns_lshl_b32 s{sTmp}, s{sTmp}, 4\ns_add_u32 s{sTmp}, s{sTmp}, {RECS}\nv_mov_b32 v{vC}, 0\ns_mov_b64 exec, 1")
    if FP: k(".stamp 9")
    k(f"s_waitcnt vmcnt(@)\nbuffer_store_dwordx4 {q('v',A0)}, v{vC}, {WSR}, s{sTmp} offen sc1"); k(ALL)
    if FP: k(".stamp 9")
    dma_pop(100)
    if O("warmat", 0) == 1: k(".warm")
    k("spin_ln:")
    k(f"s_load_dwordx8 s[28:35], s[{pWS}:{pWS+1}], s{sXo} glc\ns_add_u32 s{sSpin}, s{sSpin}, 1\ns_cmp_gt_u32 s{sSpin}, {SPB()}\ns_cselect_b32 s{sTmp2}, 0, -1\ns_waitcnt lgkmcnt(0)")
    k(f"s_xor_b32 s{sTmp}, s28, s{sTag}")
    for i in range(1, 8): k(f"s_xor_b32 s{28+i}, s{28+i}, s{sTag}\ns_or_b32 s{sTmp}, s{sTmp}, s{28+i}")
    k(f"s_and_b32 s{sTmp}, s{sTmp}, s{sTmp2} ; @scc\ns_cbranch_scc1 spin_ln")
    if FP: k(".stamp 9")
    for n in range(O("xpre", 2)):
        k(xoff(n, 77))
        for l in xload(n, sXo): k(l)

ZIG = [(0, 0), (1, 0), (1, 1), (0, 1), (0, 2), (1, 2), (1, 3), (0, 3)]

class Frag:
    def __init__(self, reg, obj, akey, addr, second=None):
        self.reg = reg; self.obj = obj; self.akey = akey; self.addr = addr; self.second = second; self.g0 = None; self.g1 = None
    def q(self): return q("a", self.reg)

def gen_main(verbose=True):
    name = "main"
    PST_ = 2621440 + O("pskew", 1024)
    k = Kernel(NAME + "_kernel", 256, 256, SPARE + 16384, 512, 256, sgprs=102)
    startup(k, name)
    k.pre = ".p2align 12\n"
    k(".stamp 0")
    k("head_code:")
    R = Prog("main", LD=O("ld", 7), LV=O("lv", 60))
    R.prelude(k.lines)
    frags = []; started = set(); OBJ = {}
    def mm(d, fr, b, c0="0", fresh=None):
        kx = (d, fresh)
        c = d if kx in started else c0
        started.add(kx)
        g = R.mf(f"{MF} {d}, {fr.q()}, {b}, {c}")
        if fr.g0 is None: fr.g0 = g
        fr.g1 = g
        return g
    def newfrag(reg, obj, akey, addr, second=None):
        f = Frag(reg, obj, akey, addr, second); frags.append(f); return f
    def zig(fa, fb, D, B, flip, fresh=None, subs=(0, 1, 2, 3)):
        for f, s in ZIG[:2 * len(subs)]:
            s = subs[len(subs) - 1 - s if flip else s]
            mm(D(f, s), (fa, fb)[f], B(f, s), fresh=fresh)
    extra = {}
    def flush_extra():
        for g in sorted(extra):
            if g <= R.g:
                for t_, lab in extra.pop(g): MARK[lab] = R.mf(t_)
    MARK = {}
    TM = O("tm", 4); CHH = O("chh", 1)
    nat = [(ks, dt) for ks in range(2) for dt in range(12)]
    HF = [(p, ks, dt) for p in range(CHH) for (ks, dt) in nat] + [(p, ks, dt) for p in range(CHH, 10 - TM // 2) for dt in range(12) for ks in range(2)]
    HF += [(p, ks, dt) for dt in range(12) for p in range(10 - TM // 2, 10) for ks in range(2)]
    for p in range(10): OBJ[f"W{p}"] = (((p + 2) % 6) * SLOT, SLOT)
    GC = O("gc", 720)
    extra[GC + 34] = [(f"{MF} {q('v', (20, 58)[mat])}, {q('v', 48+4*ks)}, {q('v', 32+8*ks+4*mat)}, {'0' if ks == 0 else q('v', (20, 58)[mat])}", "gu") for ks in range(2) for mat in range(2)]
    done_at = {}
    for n in range(0, 240, 2):
        pr = []
        for m in (n, n + 1):
            p, ks, dt = HF[m]; a = OBJ[f"W{p}"][0] + ks * 12288 + (dt >> 2) * 1024
            pr.append(newfrag(224 + 4 * (m % 6), f"W{p}", ("T", dt & 3), a, a + 6144))
        zig(pr[0], pr[1], lambda f, s: q("v", oct_(HF[n + f][2] >> 1, s) + 4 * (HF[n + f][2] & 1)), lambda f, s: Xreg(2 * HF[n + f][0] + HF[n + f][1], s), (n >> 1) & 1, fresh="A")
        for m in (n, n + 1): done_at[HF[m][2] >> 1] = R.g - 1
        flush_extra()
    GB = R.g
    LAG = O("lag", 2)
    VB = [72 * KB, 0, 72 * KB]
    VPOS = [list(range(16)), [12, 13, 14, 15] + list(range(12)), list(range(16))]
    for s in range(8): OBJ[f"K{s}"] = ((s % 3) * SLOT, SLOT)
    for a in range(3):
        for ks in range(16): OBJ[f"V{a}_{ks}"] = (VB[a] + VPOS[a][ks] * 4096, 4096)
    TB = []; sdone = {}; pv0 = {}
    def Sq(t, kt, sub): return Pv(t, sub) if kt == 0 else PQ[4 * (t & 1) + sub]
    def PV0(t):
        fr = [newfrag(232 + 4 * ((2 * t + T) % 4), f"V0_{t}", ("T", T), OBJ[f"V0_{t}"][0], OBJ[f"V0_{t}"][0] + 2048) for T in range(2)]
        zig(fr[0], fr[1], lambda f, s: q("a", acc0(f, s)), lambda f, s: q("v", Pv(t, s)), t & 1, fresh="pv0")
        pv0[t] = R.g - 1
    for t in range(16):
        TB.append(R.g)
        for kt in range(2):
            fr = [newfrag(184 + 24 * kt + 4 * i, f"K{t>>1}", ("K", i & 1), OBJ[f"K{t>>1}"][0] + (4 * (t & 1) + 2 * kt) * 3072 + (i >> 1) * 1024) for i in range(6)]
            first = t == 0 and kt == 0
            for si, sub in enumerate(range(4)):
                rng = list(range(5 if first else 6))
                for i in (rng if si % 2 == 0 else rng[::-1]):
                    sdone[(t, kt, sub)] = mm(q("v", Sq(t, kt, sub)), fr[i], q("a", Qa(i, sub)), fresh=("S", t, kt))
            if first:
                for sub in range(4): sdone[(t, kt, sub)] = mm(q("v", Sq(t, kt, sub)), fr[5], q("v", oct_(5, sub)), fresh=("S", t, kt))
        if t >= LAG: PV0(t - LAG)
    GF = R.g
    for a in range(8):
        for sub in range(4):
            f_, r_ = Pfin(2 * a, sub)
            lastF = R.mf(f"{SM} {q('v', PQ[sub])}, {q('a', aONE)}, {q(f_, r_, 8)}, v{vIdx}")
    for t in range(16 - LAG, 16): PV0(t)
    GCs = R.g
    nring = 0
    def ringreg():
        nonlocal nring
        nring += 1
        return 184 + 4 * ((nring - 1) % 8)
    cdone = {}; TC = {}
    for T in range(2, 12):
        TC[T] = R.g; a = T >> 2
        for ks in range(0, 16, 2):
            fr = [newfrag(ringreg(), f"V{a}_{ks+f}", ("T", T & 3), OBJ[f"V{a}_{ks+f}"][0], OBJ[f"V{a}_{ks+f}"][0] + 2048) for f in range(2)]
            zig(fr[0], fr[1], lambda f, s: q("v", PQ[4 * ((T + 1) & 1) + s]), lambda f, s: q(*Pfin(ks + f, s)), (ks >> 1) & 1, fresh=("C", T))
        cdone[T] = R.g - 1
    GD = R.g
    NCOL = O("ncol", 12); NKM = 24 - NCOL
    part = [(h, i) for i in range(6) for h in (1, 2, 3)]
    KSEQ = [(0, i) for i in range(5)] + part[:4] + [(0, 5)] + part[4:]
    SADDR = [136 * KB, 0, 20 * KB, 40 * KB, 72 * KB, 92 * KB, 112 * KB]
    for n in range(NKM):
        OBJ[f"X{n}"] = (SADDR[n >> 1] + (n & 1) * 8192, 4096); OBJ[f"Y{n}"] = (SADDR[n >> 1] + (n & 1) * 8192 + 4096, 4096)
        if n % 2 == 0: OBJ[f"H{n>>1}"] = (SADDR[n >> 1] + 16384, 4096)
    for n in range(NKM, 24):
        m = n - NKM
        OBJ[f"X{n}"] = (m * 4096, 4096); OBJ[f"Y{n}"] = ((136 * KB - 4096 * (m + 1)) if NKM <= 12 else 72 * KB + 4096 * m, 4096)
        if n % 2 == 0: OBJ[f"H{n>>1}"] = (136 * KB + (m >> 1) * 4096, 4096)
    oslot = {(0, i): [16 * i + 4 * s for s in range(4)] for i in range(6)}
    early_slots = [216, 232, 152, 168, 96, 112, 128]
    for n_, st in enumerate(part):
        oslot[st] = [early_slots[n_] + 4 * s for s in range(4)] if n_ < 7 else oslot[KSEQ[n_ - 7]]
    Of = lambda n, s: q("a", oslot[KSEQ[n]][s])
    def wofrag(n, pos, b):
        if pos == 0:
            a = OBJ[f"H{n>>1}"][0] + (n & 1) * 2048
            return newfrag(ringreg(), f"H{n>>1}", ("H", b), a, a + 1024)
        ob = f"{'XY'[(pos-1)>>1]}{n}"
        return newfrag(ringreg(), ob, ("T", 2 * ((pos - 1) & 1) + b), OBJ[ob][0], OBJ[ob][0] + 2048)
    FDG = O("fdg", 270)
    G = lambda i, r=0: 56 + 4 * i + r
    extra[GD + FDG] = [(f"{MF} {q('v', G(7))}, {q('v', G(3))}, {q('v', G(5))}, 0", "y0"), (f"{MF} {q('v', G(7))}, {q('v', G(4))}, {q('v', G(6))}, {q('v', G(7))}", "y")]
    flip = 0; SD = {}
    CHK = O("chk", 0)
    for n in range(0, NKM, 2):
        SD[n >> 1] = R.g
        if n >> 1 < CHK:
            for pos in range(5):
                for b in range(2):
                    zig(wofrag(n, pos, b), wofrag(n + 1, pos, b), lambda f, s: q("v", unit(pos, s) + 4 * b), lambda f, s: Of(n + f, s), flip, fresh="D"); flip ^= 1; flush_extra()
        else:
            for m in (n, n + 1):
                for pos in range(5):
                    zig(wofrag(m, pos, 0), wofrag(m, pos, 1), lambda f, s: q("v", unit(pos, s) + 4 * f), lambda f, s: Of(m, s), flip, fresh="D"); flip ^= 1; flush_extra()
    udone = {}; CS = {}
    CHC = O("chc", 1)
    for pos, subs in [(0, (0, 1, 2, 3)), (1, (0, 1, 2, 3)), (2, (0, 1, 2, 3)), (3, (0, 1, 2, 3)), (4, (0, 1)), (4, (2, 3))]:
        CS[(pos, subs[0])] = R.g
        if CHC:
            for n in range(NKM, 24, 2):
                for b in range(2):
                    zig(wofrag(n, pos, b), wofrag(n + 1, pos, b), lambda f, s: q("v", unit(pos, s) + 4 * b), lambda f, s: Of(n + f, s), flip, fresh="D", subs=subs); flip ^= 1
        else:
            for m in range(NKM, 24):
                zig(wofrag(m, pos, 0), wofrag(m, pos, 1), lambda f, s: q("v", unit(pos, s) + 4 * f), lambda f, s: Of(m, s), flip, fresh="D", subs=subs); flip ^= 1
        for s in subs: udone[(pos, s)] = R.g - 1
    NG = R.g
    assert not extra
    R.tight = [(GB - 200, GCs + 60)]
    touch = {}
    for m in R.back:
        for r in m.R | m.W: touch.setdefault(r, []).append(m.back)
    def last_touch(f, reg, n, before):
        lo = -1
        for r in range(reg, reg + n):
            tl = touch.get((f, r), []); i = bisect.bisect_left(tl, before)
            if i: lo = max(lo, tl[i - 1])
        return lo
    def first_touch(f, reg, after):
        tl = touch[(f, reg)]; return tl[bisect.bisect_right(tl, after)]
    BARS = [-1] + [96 * p + 78 + (4 if 96 * p + 78 > GC + 34 else 0) for p in range(8 if TM == 4 else 9)] + [GB - 26]
    BARS += [TB[2 * s - 1] + 25 for s in range(1, 8)] + [TB[15] + 25, GCs + 2]
    BARS += [TC[T] - 22 for T in (4, 6, 8, 10)] + ([TC[4] + 20] if O("barv1", 1) else [])
    BARS += [SD[s] - 22 for s in range(NKM // 2)] + [CS[(p, 0)] - 22 for p in (0, 1, 3)] + [CS[(1, 0)] + 26, CS[(3, 0)] + 26]
    BARS = sorted(set(BARS))
    bar = {g: R.add("s_barrier", g + 0.9 if g >= 0 else -1.5, early=g, late=g) for g in BARS}
    for b_ in bar.values(): b_.fixed = True
    AB = {("T", i): [vT[i], 2 * SLOT] for i in range(4)}; AB.update({("K", i): [vK[i], 0] for i in range(2)}); AB.update({("H", i): [vH[i], None] for i in range(2)})
    first_rd = {}; last_rd = {}
    LEAD = O("lead", 30)
    def use(obj, ref):
        first_rd[obj] = min(first_rd.get(obj, 1e9), ref); last_rd[obj] = max(last_rd.get(obj, -1e9), ref)
        return dict(R=["P:" + obj], AW=["C:" + obj])
    prev_ref = -1.0
    frs = sorted(frags, key=lambda f: f.g0)
    reinit = {}
    for f in frs:
        f.ref = max(last_touch("a", f.reg, 4, f.g0) + 0.5, f.g0 - LEAD + 0.5, -1.0)
        if f.obj not in first_rd:
            bs = [g for g in BARS if g <= f.g0 - R.LD - 2]
            f.ref = max(f.ref, (bs[-1] + 0.95 if bs[-1] >= 0 else -1.0)) if bs else f.ref
        else: f.ref = max(f.ref, first_rd[f.obj])
        use(f.obj, f.ref)
    byk = {}
    for f in frs: byk.setdefault(f.akey, []).append(f)
    for akey, fl in byk.items():
        for a_, b_ in zip(fl, fl[1:]): b_.ref = max(b_.ref, a_.ref)
    for f in sorted(frs, key=lambda f: (f.ref, f.g0)):
        reg, base = AB[f.akey]
        hi = (f.second or f.addr)
        if f.akey[0] == "T" and f.g0 >= GB and f.akey not in reinit:
            reinit[f.akey] = f.ref; assert base == 4 * SLOT
            R.add(f"v_add_u32 v{reg}, v{vDl}, v{reg}", GB - 0.5, prio=GB + 40); AB[f.akey][1] = base = 72 * KB
        elif f.akey[0] == "H" and base is None:
            nb = min(f.addr, 96 * KB)
            L = Lines()
            L(f"v_lshrrev_b32 v{reg}, 2, v{vL}\nv_lshlrev_b32 v{reg}, 6, v{reg}\nv_and_b32 v21, 3, v{vL}\nv_lshl_add_u32 v{reg}, v21, 3, v{reg}\nv_and_b32 v21, 16, v{vL}\nv_lshl_add_u32 v{reg}, v21, 1, v{reg}")
            if f.akey[1]: L(f"v_xor_b32 v{reg}, 32, v{reg}")
            L(f"v_add_u32 v{reg}, {nb}, v{reg}")
            R.seq_(L.l, f.ref, early=int(f.ref) - 60); AB[f.akey][1] = base = nb
        elif not (base <= f.addr and hi - base < (65536 if f.g0 >= GB else 2 * SLOT)):
            nxt = [x for x in byk[f.akey] if (x.ref, x.g0) >= (f.ref, f.g0)]
            lo_, hi_ = f.addr, hi
            for x in nxt:
                l2, h2 = min(lo_, x.addr), max(hi_, x.second or x.addr)
                if h2 - l2 >= 65536: break
                lo_, hi_ = l2, h2
            if f.g0 < GB: lo_ = f.addr // (2 * SLOT) * 2 * SLOT
            d_ = lo_ - base
            R.add(f"v_add_u32 v{reg}, {d_}, v{reg}" if d_ > 0 else f"v_subrev_u32 v{reg}, {-d_}, v{reg}", f.ref); AB[f.akey][1] = base = lo_
        u = use(f.obj, f.ref)
        if f.second is None: R.add(f"ds_read_b128 {f.q()}, v{reg} offset:{f.addr - base}", f.ref, early=math.floor(f.ref), **u)
        else:
            R.add(f"ds_read_b64_tr_b16 a[{f.reg}:{f.reg+1}], v{reg} offset:{f.addr - base}", f.ref, early=math.floor(f.ref), **u)
            R.add(f"ds_read_b64_tr_b16 a[{f.reg+2}:{f.reg+3}], v{reg} offset:{f.second - base}", f.ref, early=math.floor(f.ref), **u)
    born = {f"W{p}": -2 for p in range(O("wall", 4))}
    def publish(obj):
        g = max(g for g in BARS if bar[g].ref < first_rd[obj])
        bar[g].R.add("L:" + obj); bar[g].W.add("P:" + obj); return g
    def freegap(obj):
        a, n = OBJ[obj]; g0 = 0; rd = []
        for o2 in born:
            a2, n2 = OBJ[o2]
            if o2 != obj and a < a2 + n2 and a2 < a + n:
                g = min(g for g in BARS if bar[g].ref > last_rd[o2])
                bar[g].W |= {"P:" + o2, "F:" + o2}
                if O("strict", 1): bar[g].R.add("C:" + o2)
                g0 = max(g0, g + 1); rd.append("F:" + o2)
        return g0, rd
    plan = []
    def dma(obj, pre, m0, text, at, lat=None):
        if obj not in born:
            born[obj] = None; born[obj] = freegap(obj); publish(obj)
        g0, rd = born[obj]; at = max(int(at), g0)
        for l in pre: R.add(l, at, early=at - 8, prio=at - 300)
        R.add(m0, at, early=at - 6, prio=at - 300)
        it = R.add(text, at, early=at, R=rd, AW=["L:" + obj], lat=lat); plan.append((obj, it)); return at
    for p in range(O("wall", 4)): publish(f"W{p}")
    L = Lines()
    FA0, FA1 = Rg(56, "FA0"), Rg(57, "FA1")
    L(f"v_mul_u32_u24 v{FA0}, 3072, v{vWR}\nv_add_u32 v{FA0}, v{FA0}, v{vCT}\nv_add_u32 v{FA1}, {16*3072}, v{FA0}")
    L(f"v_lshrrev_b32 v{vC}, 3, v{vL}\nv_mul_u32_u24 v{vC3}, 384, v{vC}\nv_add_u32 v{vVA}, v{vC3}, v{vCT}")
    L(f"v_bfe_u32 v{vC}, v{vL}, 4, 1\nv_bfe_u32 v{vC2}, v{vL}, 5, 1\nv_lshl_add_u32 v{vC}, v{vC}, 1, v{vC2}")
    L(f"v_and_b32 v{vC2}, 7, v{vL}\nv_xor_b32 v{vC2}, v{vC2}, v{vC}\nv_lshl_add_u32 v{vKA}, v{vC2}, 4, v{vC3}")
    L(f"v_xor_b32 v{vC2}, 4, v{vC2}\nv_lshl_add_u32 v{vKB}, v{vC2}, 4, v{vC3}\nv_add_u32 v{vKB}, 3072, v{vKB}")
    L(f"v_bfe_u32 v{vC2}, v{vL}, 1, 1\nv_bfe_u32 v{vC3}, v{vL}, 2, 1\nv_lshl_add_u32 v{vC2}, v{vC2}, 1, v{vC3}")
    L(f"v_bfe_u32 v{vC3}, v{vL}, 3, 1\nv_lshl_add_u32 v{vC2}, v{vC3}, 2, v{vC2}\nv_xor_b32 v{vC2}, v{vC2}, v{vC}\nv_lshlrev_b32 v{vC2}, 4, v{vC2}")
    L(f"v_mul_u32_u24 v{vC3}, 3072, v{vC3}\nv_and_b32 v{vC}, 7, v{vL}\nv_lshl_add_u32 v{vC3}, v{vC}, 7, v{vC3}")
    L(f"v_add_u32 v{vK[0]}, v{vC3}, v{vC2}\nv_xor_b32 v{vC2}, 64, v{vC2}\nv_add_u32 v{vK[1]}, v{vC3}, v{vC2}")
    L(f"s_mul_i32 s{sTmp}, s{sHead}, 786432\ns_add_u32 s{sTmp}, s{sTmp}, 589824")
    srd_off(L, sK, pK, f"s{sTmp}", 196608); srd_off(L, sV, pV, f"s{sTmp}", 196608)
    srd_off(L, sF1, pG, None, 1966080); srd_off(L, sF2, pU, None, 1966080)
    sFW, sFx, sGUo, sW4k, sRec = Rg(60, "FW"), Rg(61, "Fx"), Rg(62, "GUo"), Rg(44, "W4k"), Rg(47, "Rec")
    L(f"s_min_u32 s{sJob}, s2, 239\ns_mul_hi_u32 s{sTmp}, s{sJob}, {(2**32 + 23)//24}\ns_mul_i32 s{sTmp2}, s{sTmp}, 24\ns_sub_u32 s{sTmp2}, s{sJob}, s{sTmp2}")
    L(f"s_lshl_b32 s{sFW}, s{sTmp}, 6\ns_add_u32 s{sFW}, s{sFW}, s{sA}\ns_mul_i32 s{sFW}, s{sFW}, 3072\ns_lshl_b32 s{sRt}, s{sTmp2}, 7\ns_add_u32 s{sFW}, s{sFW}, s{sRt}")
    L(f"s_lshl_b32 s{sFx}, s{sTmp}, 7")
    L(f"s_mul_i32 s{sGUo}, s{sTmp}, 1536\ns_lshl_b32 s{sRt}, s{sTmp2}, 6\ns_add_u32 s{sGUo}, s{sGUo}, s{sRt}\ns_lshl_b32 s{sRt}, s{sW}, 4\ns_add_u32 s{sGUo}, s{sGUo}, s{sRt}\ns_lshl_b32 s{sGUo}, s{sGUo}, 4\ns_add_u32 s{sGUo}, s{sGUo}, {GU}")
    L(f"s_lshl_b32 s{sFl}, s2, 8\ns_lshl_b32 s{sRt}, s{sW}, 2\ns_add_u32 s{sFl}, s{sFl}, s{sRt}\ns_add_u32 s{sFl}, s{sFl}, {FLAGS}")
    L(f"s_lshl_b32 s{sFb}, s{sQt}, 3\ns_add_u32 s{sFb}, s{sFb}, s{sGrp}\ns_lshl_b32 s{sFb}, s{sFb}, 2\ns_add_u32 s{sFb}, s{sFb}, s{sW}\ns_lshl_b32 s{sFb}, s{sFb}, 7\ns_add_u32 s{sFb}, s{sFb}, {OFL}\ns_lshl_b32 s{sXid}, s{sJ}, 2\ns_add_u32 s{sXid}, s{sXid}, s{sFb}")
    L(f"s_mov_b32 s{sNL}, {fbits(-LOG2E):#x}\ns_lshl_b32 s{sW4k}, s{sW}, 12\ns_mov_b32 s{sKo}, s{sWoff}\ns_mul_i32 s{sVo}, s{sW}, 3072\ns_mov_b32 s{sRec}, {RECS}\ns_lshl_b32 s{sW1k}, s{sW}, 10")
    sPFl = Rg(67, "PFl")
    L(f"v_lshrrev_b32 v{vDl}, 5, v{vL}\nv_lshlrev_b32 v{vDl}, 11, v{vDl}\nv_sub_u32 v{vDl}, {(72*KB - 4*SLOT) & 0xffffffff:#x}, v{vDl}")
    L(f"s_lshl_b32 s{sPFl}, s2, 2\ns_add_u32 s{sPFl}, s{sPFl}, s{sW}\ns_lshl_b32 s{sPFl}, s{sPFl}, 7\ns_add_u32 s{sPFl}, s{sPFl}, {PFL}")
    R.seq_(L.l, 8, early=8)
    R.seq_(["v_mov_b32 v23, 0", f"buffer_load_dword a{aJ}, v23, {WSR}, s{sPFl} offen sc1"], 180, early=180)
    R.seq_([f"s_sub_u32 s{sTmp}, s{sFb}, s{sFl}", f"s_sub_u32 s{sTmp}, s{sTmp}, 128", f"v_and_b32 v22, 1, v{vL}", f"v_mul_lo_u32 v22, v22, s{sTmp}",
            f"buffer_load_dword a{aJ}, v22, {WSR}, s{sFl} offen offset:128 sc1"], 190, early=190)
    def code_touch(n, at):
        R.add(f"s_add_u32 s88, s88, {'32768' if n == 1 else 'code_end-code0-65536'}\ns_addc_u32 s89, s89, 0", at, early=at - 4)
        R.add(f"global_load_dword a{aJ}, v18, s[88:89]", at, early=at)
    code_touch(1, O("ct1", 600)); code_touch(2, O("ct2", 900))
    recl = [f"buffer_load_dwordx4 {q('v', 32+4*i)}, v{vRec}, {WSR}, s{sRec} offen offset:{1024*i} sc1" for i in range(4)]
    RG = O("recg", 230); RC = O("recc", 350)
    for n_, l in enumerate(recl): R.add(l, RG, early=RG + 14 * n_)
    reccond = f"v_xor_b32 v34, s{sTag}, v34\nv_xor_b32 v38, s{sTag}, v38\nv_xor_b32 v42, s{sTag}, v42\nv_xor_b32 v46, s{sTag}, v46\nv_or3_b32 v34, v34, v38, v42\nv_or_b32 v34, v34, v46\nv_cmp_ne_u32 vcc, 0, v34"
    R.seq_(reccond.split("\n"), RC, early=RC)
    R.add("s_cbranch_vccnz spin_rec\nspin_rec_ret:", RC, early=RC, W=[("v", r) for r in range(32, 48)] + [("s", "vcc")], R=[("v", int(vRec)), ("s", int(sRec))])
    kv = [32, 33, 36, 37, 40, 41, 44, 45]
    Lt = [f"v_max_u32 v20, v32, v33", f"v_min_u32 v21, v32, v33"]
    for x in kv[2:]: Lt += [f"v_med3_u32 v21, v20, v21, v{x}", f"v_max_u32 v20, v20, v{x}"]
    Lt += top2_gen(22, 2, 20, 21, 24, cross=True)[2:]
    Lt += [f"s_lshl_b32 s{sTmp}, s{sW}, 3", f"s_add_u32 s{sTmp}, s{sTmp}, {SPARE}", f"v_mov_b32 v22, s{sTmp}", f"v_mov_b32 v23, {SPARE}"]
    R.seq_(Lt, RC, early=RC)
    tb = min(g for g in BARS if g > RC + 70)
    R.add("ds_write_b64 v22, v[20:21]", RC, early=RC, AW=["L:TOP"]); bar[tb].R.add("L:TOP"); bar[tb].W.add("P:TOP")
    OBJ["TOP"] = (SPARE, 64); born["TOP"] = None
    for i in range(2): R.add(f"ds_read_b128 v[{32+4*i}:{35+4*i}], v23 offset:{16*i}", tb + 1, early=tb + 1, **use("TOP", tb + 1))
    L = Lines()
    for l in top2_gen(32, 8, 20, 21, None, cross=False): L(l)
    L(f"v_and_b32 v22, 1, v{vL}\nv_cmp_eq_u32 vcc, 1, v22\nv_readfirstlane_b32 s{sI0}, v20\nv_readfirstlane_b32 s{sI1}, v21\nv_cndmask_b32 v22, v20, v21, vcc\nv_and_b32 v22, 0x7ff, v22\nv_sub_u32 v22, 2047, v22")
    L(f"v_mul_u32_u24 v23, 1280, v22\nv_lshrrev_b32 v24, 4, v{vL}\nv_lshl_add_u32 v23, v24, 4, v23\nv_add_u32 v23, s{sFx}, v23\nv_lshlrev_b32 v24, 3, v22\nv_add_u32 v24, {STATS}, v24")
    tr_addr(L, 25, vL, 26, 2048, f"s{sW}"); L(f"v_add_u32 v25, {SPARE}, v25")
    L(f"v_lshlrev_b32 v26, 4, v{vL}\nv_cmp_gt_u32 vcc, 16, v{vL}\nv_mov_b32 v27, {OOB}\nv_cndmask_b32 v26, v27, v26, vcc")
    R.seq_(L.l, tb + 2, early=tb + 2)
    XSG = O("xsg", 530)
    R.seq_([f"global_load_dwordx4 v[48:51], v23, s[{pX}:{pX+1}]", f"global_load_dwordx4 v[52:55], v23, s[{pX}:{pX+1}] offset:64", f"buffer_load_dwordx2 v[40:41], v24, {WSR}, 0 offen sc1"], tb + 3, early=XSG, lat=O("xsl", 100))
    L = Lines()
    for i in range(8):
        L(f"v_lshlrev_b32 v42, 16, v{48+i}\nv_and_b32 v43, 0xffff0000, v{48+i}\nv_sub_f32 v42, v42, v40\nv_sub_f32 v43, v43, v40\nv_cvt_pk_bf16_f32 v44, v42, v43")
        L(f"v_lshlrev_b32 v42, 16, v44\nv_and_b32 v43, 0xffff0000, v44\nv_mul_f32 v42, v42, v41\nv_mul_f32 v43, v43, v41\nv_cvt_pk_bf16_f32 v{48+i}, v42, v43")
    R.seq_(L.l, tb + 4, early=XSG)
    OBJ["FW"] = (SPARE, 16384)
    for ks in range(2):
        for mat in range(2):
            r = 32 + 8 * ks + 4 * mat
            R.add(f"ds_read_b64_tr_b16 v[{r}:{r+1}], v25 offset:{ks*8192 + mat*1024}", GC, early=GC, **use("FW", GC))
            R.add(f"ds_read_b64_tr_b16 v[{r+2}:{r+3}], v25 offset:{ks*8192 + 4096 + mat*1024}", GC, early=GC, **use("FW", GC))
    gu = MARK["gu"]
    R.seq_(["v_mov_b32 v22, v58", "v_mov_b32 v23, v59"], gu + 0.5)
    R.add(f"buffer_store_dwordx4 v[20:23], v26, {WSR}, s{sGUo} offen sc1", gu + 0.5, AW=["GUS"], lat=O("gul", 90))
    R.seq_([f"v_mov_b32 v26, s{sTag}", f"v_min_u32 v27, 1, v{vL}", "v_lshlrev_b32 v27, 30, v27"], gu + 0.6)
    R.add(f"buffer_store_dword v26, v27, {WSR}, s{sFl} offen offset:144 sc1", gu + 0.6, R=["GUS"], kind="M")
    VH = O("vh", 6.5)
    stream = []; xn = O("xpre", 2); wn = O("wall", 4)
    for _ in range(O("xlead", 5)): stream.append(("X", xn)); xn += 1
    while xn < 20 or wn < 10:
        if wn < 10: stream.append(("W", wn)); wn += 1
        for _ in range(2):
            if xn < 20: stream.append(("X", xn)); xn += 1
    stream += [("K", 0), ("K", 1), ("V", 0), ("V", 1), ("V", 2), ("V", 3)]
    xuse = {}
    for n, (p, ks, dt) in enumerate(HF): xuse.setdefault(2 * p + ks, frags[n & ~1].g0)
    def kdma(s, cur, sp):
        for i, (m, d) in enumerate(dma_lines(sK, sKo, vKA, vKB, sWoff, OBJ[f"K{s}"][0], "")):
            cur = max(cur, g := dma(f"K{s}", [], m, d.split(";")[0], cur)) + sp
        R.add(f"s_add_u32 s{sKo}, s{sKo}, {SLOT}", g, prio=g - 300); return cur
    sVt = Rg(39, "Vt")
    def vdma(a, ks, cur):
        return dma(f"V{a}_{ks}", [f"s_add_u32 s{sVt}, s{sVo}, {ks*12288 + a*128}"], f"s_add_u32 m0, s{sW1k}, {OBJ[f'V{a}_{ks}'][0]}", f"buffer_load_dwordx4 v{vVA}, {SR(sV)}, s{sVt} offen lds", cur)
    cur = 2.0; fw = False
    for kind, n in stream:
        if not fw and cur >= O("fwg", 520):
            fw = True
            for ab in range(2):
                for mat in range(2):
                    cur = max(cur, dma("FW", [], f"s_add_u32 m0, s{sW4k}, {SPARE + ab*2048 + mat*1024}", f"buffer_load_dwordx4 v{(FA0, FA1)[ab]}, {SR((sF1, sF2)[mat])}, s{sFW} offen lds", cur)) + VH
        if kind == "W":
            for i, (m, d) in enumerate(dma_lines(sG, sGo, vGA, vGB, sWoff, OBJ[f"W{n}"][0], "")):
                cur = max(cur, g := dma(f"W{n}", [], m, d.split(";")[0], cur)) + VH
            R.seq_(wadv.split("\n"), g, prio=g - 300); w9 = g
        elif kind == "X":
            cur = max(cur, last_touch("a", XSLOT[n], 16, xuse[n]) + 1)
            R.seq_(xoff(n, 77).split("\n"), int(cur), early=int(cur) - 6, prio=int(cur) - 300)
            g = int(cur)
            for l in xload(n, sXo): R.add(l, g, early=int(cur), lat=8); cur += VH
            xlast = g
        elif kind == "K": cur = kdma(n, cur, VH)
        else: cur = max(cur, vdma(0, n, cur)) + VH
    if verbose: print("   head stream ends at gap", int(cur))
    for i in range(6):
        for sub in range(4):
            o = oct_(i, sub); e = done_at[i] + 0.5
            R.seq_([f"v_cvt_pk_bf16_f32 v{o}, v{o}, v{o+1}", f"v_cvt_pk_bf16_f32 v{o+1}, v{o+2}, v{o+3}", f"v_cvt_pk_bf16_f32 v{o+2}, v{o+4}, v{o+5}", f"v_cvt_pk_bf16_f32 v{o+3}, v{o+6}, v{o+7}",
                    f"v_permlane16_swap_b32 v{o}, v{o+2}", f"v_permlane16_swap_b32 v{o+1}, v{o+3}"], e, prio=e + 2 * sub)
            R.seq_([f"v_accvgpr_write_b32 a{Qa(i, sub)+r}, v{o+r}" for r in range(4)], e, prio=e + 2 * sub + (6 if i < 5 else 30))
    sHb = [Rg(44 + h, f"Hb{h}") for h in range(4)]; sOp = [None, Rg(59, "Op1"), Rg(60, "Op2"), Rg(61, "Op3")]; sOw = Rg(55, "Ow"); sC = Rg(50, "C")
    CG = max(w9, xlast, gu) + 1
    L = Lines()
    L(f"s_mul_i32 s{sTmp}, s{sGrp}, {768*1280}\ns_mul_i32 s{sTmp2}, s{sJ}, 320\ns_add_u32 s{sTmp}, s{sTmp}, s{sTmp2}\ns_sub_u32 s{sTmp2}, 7864320, s{sTmp}")
    srd_off(L, sG, pWO, f"s{sTmp}", f"s{sTmp2}")
    L(f"s_mul_i32 s{sTmp}, s{sGrp}, {768*1280}"); srd_off(L, sF2, pWO, f"s{sTmp}", 768 * 1280)
    L(f"s_mul_i32 s{sTmp}, s{sGrp}, {4*786432}\ns_add_u32 s{sTmp}, s{sTmp}, {OF}"); srd_off(L, sXN, pWS, f"s{sTmp}", 4 * 786432)
    L(f"s_lshl_b32 s{sOw}, s{sJ}, 5\ns_add_u32 s{sOw}, s{sOw}, s{sQ64}\ns_mul_i32 s{sOw}, s{sOw}, 24576\ns_lshr_b32 s{sC}, s{sGrp}, 1")
    for h in range(4):
        L(f"s_add_u32 s{sTmp}, s{sJ}, {h}\ns_and_b32 s{sTmp}, s{sTmp}, 3\ns_mul_i32 s{sHb[h]}, s{sTmp}, {192*1280}")
        if h: L(f"s_lshl_b32 s{sTmp}, s{sTmp}, 5\ns_add_u32 s{sTmp}, s{sTmp}, s{sQ64}\ns_mul_i32 s{sOp[h]}, s{sTmp}, 24576")
    for m in range(4): L(f"s_mov_b32 s{72+m}, s{sTag}")
    L(f"s_lshl_b32 s{sTmp}, s{sC}, 6\ns_xor_b32 s{sTmp}, s{sTmp}, {128+64}\nv_xor_b32 v{vWoX}, s{sTmp}, v{vCT}\nv_xor_b32 v{vWoY}, 128, v{vWoX}")
    L(f"s_and_b32 s{sTmp}, s{sJ}, 1\ns_lshl_b32 s{sTmp}, s{sTmp}, 6\ns_mul_i32 s{sTmp2}, s{sW}, {8*1280}\ns_add_u32 s{sTmp}, s{sTmp}, s{sTmp2}\nv_lshrrev_b32 v21, 3, v{vL}\nv_mul_u32_u24 v21, 1280, v21\nv_add_u32 v21, s{sTmp}, v21")
    L(f"v_add_u32 v{vWoX}, v{vWoX}, v21\nv_add_u32 v{vWoY}, v{vWoY}, v21")
    L(f"v_and_b32 v21, 3, v{vL}\nv_lshlrev_b32 v21, 4, v21\nv_and_b32 v22, 16, v{vL}\nv_lshlrev_b32 v22, 1, v22\nv_xor_b32 v21, v21, v22\nv_lshrrev_b32 v22, 2, v{vL}\nv_mul_u32_u24 v22, 1280, v22\nv_add_u32 v21, v21, v22")
    L(f"s_and_b32 s{sTmp}, s{sJ}, 1\ns_xor_b32 s{sTmp}, s{sTmp}, 1\ns_lshl_b32 s{sTmp}, s{sTmp}, 8\ns_and_b32 s{sTmp2}, s{sW}, 1\ns_mul_i32 s{sTmp2}, s{sTmp2}, {16*1280}\ns_add_u32 s{sTmp}, s{sTmp}, s{sTmp2}\nv_add_u32 v{vWoH}, s{sTmp}, v21")
    L(f"v_lshlrev_b32 v{vX}, 4, v{vL}\nv_min_u32 v{vZ}, 1, v{vL}\nv_lshlrev_b32 v{vZ}, 30, v{vZ}")
    L(f"v_and_b32 v{vIdx}, 1, v{vL}\nv_mul_u32_u24 v{vIdx}, 0xaaaa, v{vIdx}\nv_add_u32 v{vIdx}, 0x4444, v{vIdx}\nv_mov_b32 v21, 0x3f803f80")
    for r in range(4): L(f"v_accvgpr_write_b32 a{aONE+r}, v21")
    R.seq_(L.l, CG, early=CG)
    for t in range(16):
        for kt in range(2):
            for sub in range(4):
                s = Sq(t, kt, sub); p = Pv(t, sub) + 2 * kt; e = sdone[(t, kt, sub)] + 0.5
                R.seq_([f"v_exp_f32 v{s+r}, v{s+r}" for r in range(4)] + [f"v_cvt_pk_bf16_f32 v{p}, v{s}, v{s+1}", f"v_cvt_pk_bf16_f32 v{p+1}, v{s+2}, v{s+3}"], e, prio=e)
    mv0 = pv0[1] + 1; mv1 = TB[12] - 10
    for o in range(NPA):
        t, sub = 2 * (o >> 2), o & 3
        for r in range(8):
            e = max(mv0 + (mv1 - mv0) * (8 * o + r) / (8.0 * NPA), pv0[t + 1] + 0.5)
            R.add(f"v_accvgpr_write_b32 a{Pa(t, sub)+r}, v{Pv(t, sub)+r}", pv0[t + 1] + 0.5, early=int(e) - 12, prio=e + 12)
    VBs = O("vb", 12)
    cur = max(cur, GB - 20); vn = 4
    for s in range(2, 8):
        cur = kdma(s, cur, VBs)
        for _ in range(2): cur = max(cur, vdma(0, vn, cur)) + VBs; vn += 1
    sM_ = Rg(48, "M"); sYo = Rg(62, "Yo"); sFD = Rg(41, "FD"); sTw = Rg(42, "Tw"); vTw = Rg(22, "Tw")
    TG = lambda n: TB[O("tch0", 1) + O("tchs", 2) * n] + O("tcho", 36)
    L = Lines()
    L(f"s_lshr_b32 s{sTw}, s2, 3\ns_lshl_b32 s{sTw}, s{sTw}, 2\ns_add_u32 s{sTw}, s{sTw}, s{sW}\ns_mul_i32 s{sTw}, s{sTw}, {60*128}\nv_min_u32 v{vTw}, 11, v{vL}\nv_lshlrev_b32 v{vTw}, 7, v{vTw}")
    R.seq_(L.l, CG + 1, early=CG + 1)
    for n in range(5): R.add(f"buffer_load_dword a{aJ}, v{vTw}, {SR(sF2)}, s{sTw} offen offset:{(n % 2)*1536}" + (f"\ns_add_u32 s{sTw}, s{sTw}, 3072" if n % 2 else ""), TG(n), early=TG(n))
    L = Lines()
    L(f"s_lshl_b32 s{sTw}, s{sQ64}, 4\ns_mul_i32 s{sTw}, s{sTw}, 384\nv_and_b32 v{vTw}, 15, v{vL}\nv_mul_u32_u24 v{vTw}, 384, v{vTw}")
    L(f"buffer_load_dword a{aJ}, v{vTw}, {SR(sV)}, s{sTw} offen offset:256")
    R.seq_(L.l, TG(5), early=TG(5))
    L = Lines(); srd_off(L, sF1, pD, None, 1966080)
    L(f"s_mul_hi_u32 s{sM_}, s{sJob}, {(2**32 + 9)//10}\ns_mul_i32 s{sTw}, s{sM_}, {64*1280 - 1280}\ns_lshl_b32 s{sTmp}, s{sJob}, 7\ns_add_u32 s{sTw}, s{sTw}, s{sTmp}\ns_mul_i32 s{sTmp}, s{sW}, {16*1280}\ns_add_u32 s{sTw}, s{sTw}, s{sTmp}")
    L(f"v_and_b32 v{vTw}, 15, v{vL}\nv_mul_u32_u24 v{vTw}, 1280, v{vTw}\nbuffer_load_dword a{aJ}, v{vTw}, {SR(sF1)}, s{sTw} offen")
    R.seq_(L.l, TG(6), early=TG(6))
    sKt = Rg(38, "Kt"); sKu = Rg(36, "Ku")
    def wodma(u, n, cur):
        if u == "H":
            (h0, i0), (h1, i1) = KSEQ[n], KSEQ[n + 1]
            pre = [f"s_add_u32 s{sKt}, s{sHb[h0]}, {i0*40960}", f"s_add_u32 s{sKu}, s{sHb[h1]}, {i1*40960}", f"s_cmp_lt_u32 s{sW}, 2\ns_cselect_b32 s{sKt}, s{sKt}, s{sKu}"]
            return dma(f"H{n>>1}", pre, f"s_add_u32 m0, s{sW1k}, {OBJ[f'H{n>>1}'][0]}", f"buffer_load_dwordx4 v{vWoH}, {SR(sG)}, s{sKt} offen lds", cur)
        h, i = KSEQ[n]
        return dma(f"{u}{n}", [f"s_add_u32 s{sKt}, s{sHb[h]}, {i*40960}"], f"s_add_u32 m0, s{sW1k}, {OBJ[f'{u}{n}'][0]}", f"buffer_load_dwordx4 v{vWoX if u == 'X' else vWoY}, {SR(sG)}, s{sKt} offen lds", cur)
    def wostage(s, cur, sp):
        for u, n in (("H", 2 * s), ("X", 2 * s), ("Y", 2 * s), ("X", 2 * s + 1), ("Y", 2 * s + 1)): cur = max(cur, wodma(u, n, cur)) + sp
        return cur
    for ks in range(16): cur = max(cur, vdma(1, ks, cur)) + (VBs if ks < 10 else O("vc", 8))
    for sub in range(4): R.seq_([f"v_mov_b32 v{PQ[sub]}, 0", f"v_mov_b32 v{PQ[sub]+1}, 0"], GF - 0.5)
    L = Lines()
    for sub in range(4): L(f"v_add_f32 v{PQ[sub]}, v{PQ[sub]}, v{PQ[sub]+1}")
    for sub in range(4): L(f"v_rcp_f32 v{vLi[sub]}, v{PQ[sub]}")
    L(f"v_max3_f32 v21, v{PQ[0]}, v{PQ[1]}, v{PQ[2]}\nv_max3_f32 v21, v21, v{PQ[3]}, v{vLi[0]}\nv_max3_f32 v21, v21, v{vLi[1]}, v{vLi[2]}\nv_max_f32 v21, v21, v{vLi[3]}")
    L(f"v_cmp_nge_f32 vcc, {fbits(2.0**O('lim', 64)):#x}, v21")
    R.seq_(L.l, lastF + 0.5, prio=0)
    rw = [("v", r) for r in list(range(16, 20)) + list(range(21, 256))] + [("a", r) for r in list(range(96, 184)) + list(range(216, 248))] + [("s", "vcc"), ("s", 77), ("s", 78), "CHK"]
    rr = [("a", r) for r in list(range(96)) + list(range(248, 252))] + [("v", r) for r in (1, 8, 9, 20)] + [("s", r) for r in range(sK, sK + 4)] + [f"P:V0_{ks}" for ks in range(16)]
    R.fix(GCs - 1, "s_cbranch_vccnz rare\nrare_ret:", W=rw, R=rr)
    pv0base = [AB_ for AB_ in (72 * KB, 72 * KB)]
    D1 = O("d1", 80); oflag = {}
    vFv = Rg(4, "Fv")
    for i in range(6):
        for sub in range(4):
            for b in range(2):
                T = 2 * i + b; dst = Qa(i, sub) + 2 * b
                if i == 0:
                    e = GCs - 0.001 + 0.0005; a = acc0(T, sub); t0 = [21, 22, 23, 5]
                    ls = [f"v_accvgpr_read_b32 v{t0[r]}, a{a+r}" for r in range(4)]
                else:
                    e = cdone[T] + 0.5; t0 = [PQ[4 * ((T + 1) & 1) + sub] + r for r in range(4)]; ls = []
                ls += [f"v_mul_f32 v{t0[r]}, v{vLi[sub]}, v{t0[r]}" for r in range(4)]
                ls += [f"v_cvt_pk_bf16_f32 v{t0[0]}, v{t0[0]}, v{t0[1]}", f"v_cvt_pk_bf16_f32 v{t0[1]}, v{t0[2]}, v{t0[3]}", f"v_accvgpr_write_b32 a{dst}, v{t0[0]}", f"v_accvgpr_write_b32 a{dst+1}, v{t0[1]}"]
                R.seq_(ls, e, prio=e + 4 + 6 * sub)
            R.add(f"buffer_store_dwordx4 {q('a', Qa(i, sub))}, v{vX}, {SR(sXN)}, s{sOw} offen offset:{sub*1024} sc1", e, AW=[f"OST{i}"], lat=D1)
        R.add(f"s_add_u32 s{sOw}, s{sOw}, 4096", e)
        R.seq_([f"s_add_u32 s{sTmp}, s{sTag}, {i+1}", f"v_mov_b32 v{vFv}, s{sTmp}"], e)
        oflag[i] = R.add(f"buffer_store_dword v{vFv}, v{vZ}, {WSR}, s{sXid} offen sc1", e, R=[f"OST{i}"], kind="M")
    osl = f"s_load_dwordx4 s[72:75], s[{pWS}:{pWS+1}], s{sFb} glc"
    ocheck = ["s_sub_u32 s78, s72, s77"] + [x for m in range(1, 4) for x in (f"s_sub_u32 s79, s{72+m}, s77", "s_max_u32 s78, s78, s79")]
    ouse = {}
    for n in range(24): ouse[KSEQ[n]] = first_touch("a", oslot[KSEQ[n]][0], (SD[n >> 1] if n < NKM else CS[(0, 0)]) - 1 + (40 if (n < NKM and n & 1 and n >> 1 >= CHK) else 0))
    OD = O("od", 230); PL = O("pl", 56); OSP = O("osp", 5); HL = O("hl", 44)
    ocur = 0; sOt = Rg(37, "Ot")
    for n_, (h, i) in enumerate(part):
        rdy = (GCs + 30 if i == 0 else cdone[2 * i + 1]) + OD
        at = max(rdy + (HL if h > 1 else 0), ocur, min(last_touch("a", r, 4, ouse[(h, i)] - 8) for r in oslot[(h, i)]) + 1)
        at = max(at, max(last_touch("a", r, 4, ouse[(h, i)] - 8) for r in oslot[(h, i)]) + 1)
        if h == 1:
            R.add(f"s_add_u32 s77, s{sTag}, {i+1}", at - PL, early=at - PL - 4)
            R.add(osl + " ; @nowait", at - PL, early=at - PL, prio=at - 300, nowait=True)
            R.seq_(ocheck, at - 8, early=at - 10, prio=at - 300)
            R.add(f"s_cmp_gt_u32 s78, {5-i}\ns_cbranch_scc1 spin_o{i}\nspin_o{i}_ret:", at - 8, early=at - 10, W=[f"OK{i}"] + [("s", r) for r in (72, 73, 74, 75, 78, 79)], R=[("s", 77), ("s", int(sFb))])
        R.add(f"s_add_u32 s{sOt}, s{sOp[h]}, {i*4096}", at, early=at - 6, prio=at - 300)
        for sub in range(4):
            R.add(f"buffer_load_dwordx4 {q('a', oslot[(h, i)][sub])}, v{vX}, {SR(sXN)}, s{sOt} offen offset:{sub*1024} sc1", at, early=int(at + OSP * sub), R=[f"OK{i}"], lat=O("olat", 30))
        ocur = int(at + 4 * OSP)
        if verbose: print(f"     O{h}_{i}: issue {at - GD} use {ouse[(h, i)] - GD}")
    VCs = O("vc", 8)
    cur = wostage(0, cur, VCs)
    for ks in range(16): cur = max(cur, vdma(2, ks, cur)) + O("vc2", 12)
    for s in (1, 2, 3): cur = wostage(s, cur, O("vc3", 12))
    L = Lines(); sGp = Rg(42, "Gp")
    L(f"s_lshl_b32 s{sGp}, s{sM_}, 8\ns_add_u32 s{sGp}, s{sGp}, {FLAGS + 144}")
    L(f"v_lshrrev_b32 v22, 2, v{vL}\nv_min_u32 v22, 9, v22\nv_mul_u32_u24 v22, {24*256}, v22\nv_and_b32 v23, 3, v{vL}\nv_lshl_add_u32 v22, v23, 2, v22")
    gpoll = f"buffer_load_dword v23, v22, {WSR}, s{sGp} offen sc1"
    L(gpoll); L(f"v_cmp_ne_u32 vcc, s{sTag}, v23")
    GP = TC[6]
    R.seq_(L.l, GP, early=GP)
    R.add("s_cbranch_vccnz spin_gu\nspin_gu_ret:", GP, early=GP, W=["GUOK", ("v", 23), ("s", "vcc")], R=[("v", 22), ("s", int(sGp))])
    OBJ["GL"] = (60 * KB, 10 * KB); OBJ["FD"] = (112 * KB if NKM <= 12 else 132 * KB - 0, 8 * KB) if NKM <= 12 else (60 * KB, 8 * KB)
    HS = 70 * KB
    GLR = GD + O("glr", 64)
    vGl = Rg(21, "Gl")
    R.add(f"v_add_u32 v{vGl}, {OBJ['GL'][0]}, v{vX}", GLR, early=GLR - 10)
    for i in range(10): R.add(f"ds_read_b128 {q('v', G(i))}, v{vGl} offset:{i*1024}", GLR, early=GLR + 3 * i, **use("GL", GLR))
    for i in range(3):
        pre = [f"s_add_u32 s{sTmp}, s{sW}, {4*i}", f"s_min_u32 s{sTmp}, s{sTmp}, 9", f"s_mul_i32 s{sKt}, s{sTmp}, {1536*16}", f"s_lshl_b32 s{sTmp2}, s{sM_}, 10", f"s_add_u32 s{sKt}, s{sKt}, s{sTmp2}",
               f"s_add_u32 s{sKt}, s{sKt}, {GU}", f"s_lshl_b32 s{sTmp}, s{sTmp}, 10"]
        cur = max(cur, dma("GL", pre, f"s_add_u32 m0, s{sTmp}, {OBJ['GL'][0]}", f"buffer_load_dwordx4 v{vX}, {WSR}, s{sKt} offen sc1 lds", cur)) + 10
        plan[-1][1].R.add("GUOK")
    if verbose: print("   C stream ends at", int(cur) - GD)
    y = MARK["y"]
    L = Lines()
    sW2k = Rg(43, "W2k")
    L(f"s_mul_i32 s{sTmp2}, s{sM_}, 10\ns_sub_u32 s{sTmp2}, s{sJob}, s{sTmp2}")
    L(f"s_mul_i32 s{sYo}, s{sM_}, 1280\ns_lshl_b32 s{sTmp}, s{sTmp2}, 6\ns_add_u32 s{sYo}, s{sYo}, s{sTmp}\ns_lshl_b32 s{sTmp}, s{sW}, 4\ns_add_u32 s{sYo}, s{sYo}, s{sTmp}\ns_lshl_b32 s{sYo}, s{sYo}, 2\ns_add_u32 s{sYo}, s{sYo}, {YP}")
    L(f"s_lshl_b32 s{sFD}, s{sM_}, 6\ns_lshr_b32 s{sTmp}, s{sW}, 1\ns_lshl_b32 s{sTmp}, s{sTmp}, 5\ns_add_u32 s{sFD}, s{sFD}, s{sTmp}\ns_and_b32 s{sTmp}, s{sW}, 1\ns_lshl_b32 s{sTmp}, s{sTmp}, 2\ns_add_u32 s{sFD}, s{sFD}, s{sTmp}")
    L(f"s_mul_i32 s{sFD}, s{sFD}, 1280\ns_lshl_b32 s{sTmp2}, s{sTmp2}, 7\ns_add_u32 s{sFD}, s{sFD}, s{sTmp2}\ns_lshl_b32 s{sW2k}, s{sW}, 11")
    vFa, vFb = Rg(22, "Fa"), Rg(23, "Fb")
    wrow(L, vFa, vL, 5); L(f"v_mul_u32_u24 v{vFa}, 1280, v{vFa}"); dma_chunk_tr(L, vFb, vL, 5); L(f"v_add_u32 v{vFa}, v{vFa}, v{vFb}\nv_add_u32 v{vFb}, {16*1280}, v{vFa}")
    R.seq_(L.l, TC[10], early=TC[10])
    L = Lines()
    for i in range(1, 10):
        for r in range(4): L(f"v_add_f32 v{G(0,r)}, v{G(0,r)}, v{G(i,r)}")
    for r in range(4): round_bf16(L, G(0, r), G(0, r))
    for t in range(2):
        x = G(0, t); tm = G(1, t)
        L(f"v_mul_f32 v{tm}, s{sNL}, v{x}\nv_exp_f32 v{tm}, v{tm}\nv_add_f32 v{tm}, 1.0, v{tm}\nv_rcp_f32 v{tm}, v{tm}\nv_mul_f32 v{x}, v{x}, v{tm}")
        round_bf16(L, x, x); L(f"v_mul_f32 v{x}, v{x}, v{G(0,2+t)}")
    L(f"v_cvt_pk_bf16_f32 v{G(0,0)}, v{G(0,0)}, v{G(0,1)}")
    a1, a2, a3, tt = G(2, 0), G(2, 1), G(2, 2), G(2, 3)
    L(f"s_lshl_b32 s{sTmp}, s{sW}, 8\ns_add_u32 s{sTmp}, s{sTmp}, {HS}\nv_lshlrev_b32 v{a1}, 1, v{vL}\nv_add_u32 v{a1}, s{sTmp}, v{a1}")
    L(f"v_and_b32 v{a2}, 1, v{vL}\nv_lshlrev_b32 v{a2}, 7, v{a2}\nv_lshrrev_b32 v{tt}, 4, v{vL}\nv_lshl_add_u32 v{a2}, v{tt}, 4, v{a2}\nv_add_u32 v{a2}, s{sTmp}, v{a2}")
    tr_addr(L, a3, vL, tt, 1024, f"s{sW}"); L(f"v_add_u32 v{a3}, {OBJ['FD'][0]}, v{a3}")
    L(f"v_lshlrev_b32 v{G(1,2)}, 2, v{vL}\nv_cmp_gt_u32 vcc, 16, v{vL}\nv_mov_b32 v{tt}, {OOB}\nv_cndmask_b32 v{G(1,2)}, v{tt}, v{G(1,2)}, vcc")
    R.seq_(L.l, GLR + 1)
    FR_ = y - 30
    R.add(f"ds_write_b16 v{a1}, v{G(0,0)}", GLR + 2, W=["HS"]); R.add(f"ds_write_b16_d16_hi v{a1}, v{G(0,0)} offset:128", GLR + 2, W=["HS"])
    R.add(f"ds_read_b128 {q('v', G(3))}, v{a2}", GLR + 2, R=["HS"]); R.add(f"ds_read_b128 {q('v', G(4))}, v{a2} offset:64", GLR + 2, R=["HS"])
    for n_ in range(4): R.add(f"ds_read_b64_tr_b16 v[{G(5)+2*n_}:{G(5)+2*n_+1}], v{a3} offset:{2048*n_}", FR_, early=FR_, **use("FD", FR_))
    R.add(f"buffer_store_dword v{G(7,0)}, v{G(1,2)}, {WSR}, s{sYo} offen sc1", y + 0.5, AW=["YS"], kind="M")
    R.add(f"buffer_store_dword v{G(7,1)}, v{G(1,2)}, {WSR}, s{sYo} offen offset:2560 sc1", y + 0.5, AW=["YS"], lat=80, kind="M")
    vTg = Rg(6, "Tg")
    R.add(f"v_mov_b32 v{vTg}, s{sTag}", GD + 1)
    R.add(f"buffer_store_dword v{vTg}, v{vZ}, {WSR}, s{sFl} offen offset:160 sc1", y + 0.5, R=["YS"], kind="M")
    WD = O("wd", 9); cur = max(cur, GD - 20)
    for ab in range(2): cur = max(cur, dma("FD", [], f"s_add_u32 m0, s{sW2k}, {OBJ['FD'][0] + ab*1024}", f"buffer_load_dwordx4 v{(vFa, vFb)[ab]}, {SR(sF1)}, s{sFD} offen lds", cur)) + WD
    for s in range(4, NKM // 2): cur = wostage(s, cur, WD)
    cur = max(cur, GD + O("hg", 160))
    for n in range(NKM, 24, 2): cur = max(cur, wodma("H", n, cur)) + O("wh", 20)
    cur = max(cur, GD + O("xg", 300))
    for n in range(NKM, 24): cur = max(cur, wodma("X", n, cur)) + O("wx", 14)
    cur = max(cur, GD + O("yg", 500))
    for n in range(NKM, 24): cur = max(cur, wodma("Y", n, cur)) + O("wy", 12)
    ylast = int(cur)
    if verbose: print("   D stream ends at", int(cur) - GD)
    vRow, vXo = Rg(5, "Row"), Rg(4, "Xo"); XU = [24 + 4 * u for u in range(4)]; GU_ = [40 + 4 * u for u in range(4)]; vSt = [16, 18]
    sXc = [Rg(64, "Xc0"), Rg(65, "Xc1"), Rg(68, "Xc2"), Rg(69, "Xc3")]; sOwn = Rg(66, "Own")
    EG = GD + O("eg", 140)
    L = Lines()
    srd_off(L, sK, pX, None, 2621440); srd_off(L, sV, pOUT, None, 2621440)
    L(f"s_lshl_b32 s{sTmp}, s{sQ64}, 1\ns_and_b32 s{sTmp2}, s{sGrp}, 1\ns_add_u32 s{sTmp}, s{sTmp}, s{sTmp2}\ns_lshl_b32 s{sTmp}, s{sTmp}, 5\nv_and_b32 v{vRow}, 15, v{vL}\nv_add_u32 v{vRow}, s{sTmp}, v{vRow}")
    L(f"v_bfe_u32 v20, v{vL}, 4, 1\nv_bfe_u32 v21, v{vL}, 5, 1\nv_lshl_add_u32 v20, v20, 1, v21\nv_mul_u32_u24 v{vXo}, 1280, v{vRow}\nv_lshl_add_u32 v{vXo}, v20, 4, v{vXo}\nv_lshlrev_b32 v20, 3, v{vRow}\nv_add_u32 v20, {STATS}, v20")
    L(f"s_mul_i32 s{sTmp}, s{sJ}, 320\ns_and_b32 s{sTmp2}, s{sJ}, 1\ns_add_u32 s{sXc[0]}, s{sTmp2}, s{sC}\ns_lshl_b32 s{sXc[0]}, s{sXc[0]}, 6\ns_add_u32 s{sXc[0]}, s{sXc[0]}, s{sTmp}\ns_add_u32 s{sXc[1]}, s{sXc[0]}, {16*1280}")
    L(f"s_xor_b32 s{sTmp2}, s{sTmp2}, 1\ns_lshl_b32 s{sTmp2}, s{sTmp2}, 8\ns_add_u32 s{sXc[2]}, s{sTmp}, s{sTmp2}\ns_add_u32 s{sXc[3]}, s{sXc[2]}, {16*1280}")
    L(f"s_cmp_eq_u32 s{sC}, s{sW}\ns_cselect_b32 s{sOwn}, -1, 0\ns_andn2_b32 s{sTmp}, {BADOFF}, s{sOwn}\nv_or_b32 v21, s{sTmp}, v{vXo}")
    R.seq_(L.l, EG, early=EG)
    ls = [f"buffer_load_dwordx2 v[{vSt[u]}:{vSt[u]+1}], v20, {WSR}, 0 offen offset:{128*u} sc1" for u in range(2)]
    ls += [f"buffer_load_dwordx4 {q('v', XU[u])}, v{vXo if u < 2 else 21}, {SR(sK)}, s{sXc[u]} offen" for u in range(4)]
    R.seq_(ls, EG, early=EG + O("fxg", 40), step=O("fxs", 7), lat=O("fxl", 110))
    L = Lines()
    a, b, t, u_, w_ = 20, 21, 22, 23, G(9)
    for u in range(4):
        L(f"v_permlane16_swap_b32 v{XU[u]}, v{XU[u]+2}\nv_permlane16_swap_b32 v{XU[u]+1}, v{XU[u]+3}")
        st = vSt[u & 1]
        for i in range(4):
            x = XU[u] + i
            rnd2 = f"v_cvt_pk_bf16_f32 v{t}, v{a}, v{b}\nv_lshlrev_b32 v{a}, 16, v{t}\nv_and_b32 v{b}, 0xffff0000, v{t}"
            L(f"v_lshlrev_b32 v{a}, 16, v{x}\nv_and_b32 v{b}, 0xffff0000, v{x}\nv_sub_f32 v{a}, v{a}, v{st}\nv_sub_f32 v{b}, v{b}, v{st}"); L(rnd2)
            L(f"v_mul_f32 v{a}, v{a}, v{st+1}\nv_mul_f32 v{b}, v{b}, v{st+1}"); L(rnd2)
            L(f"v_mul_f32 v{u_}, s{sNL}, v{a}\nv_mul_f32 v{w_}, s{sNL}, v{b}\nv_exp_f32 v{u_}, v{u_}\nv_exp_f32 v{w_}, v{w_}\nv_add_f32 v{u_}, 1.0, v{u_}\nv_add_f32 v{w_}, 1.0, v{w_}")
            L(f"v_rcp_f32 v{u_}, v{u_}\nv_rcp_f32 v{w_}, v{w_}\nv_mul_f32 v{a}, v{a}, v{u_}\nv_mul_f32 v{b}, v{b}, v{w_}\nv_cvt_pk_bf16_f32 v{GU_[u]+i}, v{a}, v{b}")
    R.seq_(L.l, EG + 1, prio=EG + 150, step=0.9)
    sPa, sPb, sPf, sPs = Rg(59, "Pa"), Rg(60, "Pb"), Rg(61, "Pf"), Rg(37, "Ps"); vPf = Rg(7, "Pf")
    PG = CS[(0, 0)] + 40
    L = Lines()
    L(f"s_mul_i32 s{sPb}, s{sQ64}, 20\ns_mul_i32 s{sTmp}, s{sJ}, 5\ns_add_u32 s{sPb}, s{sPb}, s{sTmp}\ns_lshl_b32 s{sPb}, s{sPb}, 1\ns_and_b32 s{sTmp}, s{sGrp}, 1\ns_add_u32 s{sPb}, s{sPb}, s{sTmp}\ns_lshl_b32 s{sPb}, s{sPb}, 11")
    L(f"s_add_u32 s{sPs}, s{sPb}, {PART}\ns_xor_b32 s{sPa}, s{sPb}, 2048\ns_mul_i32 s{sTmp2}, s{sGrp}, {PST_}\ns_add_u32 s{sTmp2}, s{sTmp2}, {PART}\ns_add_u32 s{sPa}, s{sPa}, s{sTmp2}\ns_add_u32 s{sPb}, s{sPb}, s{sTmp2}")
    L(f"s_andn2_b32 s{sPf}, s2, 7\ns_lshl_b32 s{sPf}, s{sPf}, 2\ns_add_u32 s{sPf}, s{sPf}, s{sW}\ns_lshl_b32 s{sPf}, s{sPf}, 7\ns_add_u32 s{sPf}, s{sPf}, {PFL}")
    L(f"v_xor_b32 v{vPf}, s{sTmp}, v{vL}\nv_lshlrev_b32 v{vPf}, 2, v{vPf}\nv_lshl_add_u32 v{vPf}, v{vL}, 9, v{vPf}\nv_lshrrev_b32 v{G(8)}, 1, v{vL}\nv_min_u32 v{G(8)}, 1, v{G(8)}\nv_lshl_or_b32 v{vPf}, v{G(8)}, 30, v{vPf}")
    R.seq_(L.l, PG, early=PG - 30)
    sS0, sS1, sFt = Rg(78, "S0"), Rg(79, "S1"), Rg(77, "Ft")
    FD_ = O("fdel", 70); NFL = O("nfl", 4)
    def pflag(pos):
        if pos == 0: pre = [f"s_xor_b32 s{sTmp}, s{sC}, s{sW}", f"s_lshl_b32 s{sTmp}, s{sTmp}, 3", f"s_add_u32 s{sFt}, s{sPf}, s{sTmp}", f"s_add_u32 s{sFt}, s{sFt}, s{sW1k}"]
        else: pre = [f"s_xor_b32 s{sTmp}, s{sC}, {4-pos}", f"s_lshl_b32 s{sTmp}, s{sTmp}, 10", f"s_add_u32 s{sFt}, s{sPf}, s{sTmp}"]
        return pre, f"buffer_store_dword v{vTg}, v{vPf}, {WSR}, s{sFt} offen offset:{32 if pos == 0 else 8*(4-pos)} sc1"
    for pos in range(5):
        e = udone[(pos, 0)] + 0.5
        if pos == 0: R.seq_([f"s_add_u32 s{sS0}, s{sPa}, {4*4096}", f"s_and_b32 s{sTmp}, s{sOwn}, {BADOFF}", f"s_add_u32 s{sS1}, s{sPb}, {4*4096}", f"s_or_b32 s{sS1}, s{sS1}, s{sTmp}"], e, early=int(e) - 10)
        else: R.seq_([f"s_xor_b32 s{sTmp}, s{sC}, {4-pos}", f"s_lshl_b32 s{sTmp}, s{sTmp}, 12", f"s_add_u32 s{sS0}, s{sPa}, s{sTmp}", f"s_add_u32 s{sS1}, s{sPb}, s{sTmp}"], e, early=int(e) - 10)
        for sub in range(4 if pos < 4 else 2):
            u = unit(pos, sub); d = u if (pos or sub < 2) else unit(0, sub - 2) + 4
            R.seq_([f"v_cvt_pk_bf16_f32 v{d+r}, v{u+2*r}, v{u+2*r+1}" for r in range(4)], e, prio=0)
            R.add(f"buffer_store_dwordx4 {q('v', d)}, v{vX}, {WSR}, s{(sS0, sS1)[sub >> 1]} offen offset:{(sub & 1)*1024} sc1" + f" ; @issue PS{pos}", e, early=int(e) + O("ssp", 8) * sub * (pos < 4), AW=[f"PS{pos}"], W=[f"PS{pos}i"], lat=FD_ if pos < 3 else O("fdel3", 56), prio=0)
        if pos < NFL:
            pre, st = pflag(pos)
            R.seq_(pre, e); R.add(st, e, R=[f"PS{pos}"], kind="M")
    LAND = {6: unit(1, 0), 7: unit(1, 1), 4: unit(1, 2), 5: unit(1, 3), 2: unit(2, 0), 3: unit(2, 1), 1: unit(2, 2)}
    for n_ in range(5): LAND[9 + n_] = 56 + 8 * n_
    LAND[14] = unit(0, 0); LAND[15] = unit(0, 1)
    SEL = unit(2, 3)
    sIss = Rg(80, "Iss"); sLd = Rg(81, "Ld"); sPo = [Rg(48, "Po0"), Rg(63, "Po1")]
    FW0 = 28
    def land(bit, so): return [f"buffer_load_dwordx4 {q('v', LAND[bit] + 4*x)}, v{vX}, {WSR}, s{so} offen offset:{1024*x} sc1" for x in range(2)]
    def src(bit, d): return f"s_xor_b32 s{d}, s{sGrp}, {bit & 7}\ns_mul_i32 s{d}, s{d}, {PST_}\ns_add_u32 s{d}, s{d}, s{sPo[bit >> 3]}"
    spoll = f"s_load_dwordx16 s[{FW0}:{FW0+15}], s[{pWS}:{pWS+1}], s{sPFl} glc ; @nowait"
    AG = max(ylast + 2, udone[(0, 0)] + 2)
    R.seq_([f"s_add_u32 s{sPo[1]}, s{sPs}, {4*4096}", f"s_lshl_b32 s{sTmp}, s{sC}, 12", f"s_add_u32 s{sPo[0]}, s{sPs}, s{sTmp}", f"s_andn2_b32 s{sIss}, 0xff00, s{sOwn}", f"s_or_b32 s{sIss}, s{sIss}, 0x101"]
           + [f"s_add_u32 s{r}, s{sTag}, 1" for r in range(FW0, FW0 + 16)], AG)
    att = [(O("a0", 770), range(9, 16), "LA"), (O("a1", 840), (6, 7), "LA"), (O("a2", 895), (4, 5), "LA"), (O("a3", 940), (2, 3, 1), "LB")]
    inreg = []
    for g_, bits, tg in att:
        if not g_: continue
        g_ = max(GD + g_, AG + PL + 20)
        R.add(spoll, g_ - PL, early=g_ - PL, nowait=True, prio=0)
        for n_, bit in enumerate(bits):
            at = g_ + O("asp", 7) * n_
            R.seq_(src(bit, sLd).split("\n"), at, early=at - 8, prio=at - 300)
            R.add(f"s_cmp_eq_u32 s{FW0+bit}, s{sTag}\ns_cselect_b32 s{sLd}, s{sLd}, {BADOFF}\ns_cselect_b32 s{sTmp2}, {1 << bit}, 0", at, early=at - 4, prio=at - 300)
            R.add(f"s_or_b32 s{sIss}, s{sIss}, s{sTmp2}", at, prio=at - 300)
            for x, l in enumerate(land(bit, sLd)): R.add(l + f" ; @issue {tg}", at, early=at + 3 * x, R=(["PS4i"] if tg == "LB" else []))
            inreg.append(bit)
    R.add(spoll, NG - 0.6, early=NG - O("plast", 20), nowait=True)
    L = Lines(); s0, s1 = 20, 21
    L(f"v_bfe_u32 v{s0}, v{vL}, 2, 2\nv_lshrrev_b32 v{s1}, 4, v{vL}\nv_cmp_eq_u32 vcc, v{s0}, v{s1}\nv_and_b32 v{s0}, 1, v{vL}\nv_lshlrev_b32 v{s0}, 4, v{s0}\nv_mov_b32 v{s1}, 0x3f80\nv_lshlrev_b32 v{s0}, v{s0}, v{s1}\nv_cndmask_b32 v{s0}, 0, v{s0}, vcc")
    L(f"v_and_b32 v{s1}, 2, v{vL}\nv_cmp_eq_u32 vcc, 0, v{s1}\nv_cndmask_b32 v{SEL}, 0, v{s0}, vcc\nv_sub_u32 v{SEL+1}, v{s0}, v{SEL}")
    for r in range(2, 6): L(f"v_mov_b32 v{SEL+r}, 0")
    L(f"v_mov_b32 v{SEL+6}, v{SEL}\nv_mov_b32 v{SEL+7}, v{SEL+1}")
    sMa, sMb, sM1, sRt_ = 8, 10, 20, 22; sYF = [Rg(44, "YF0"), Rg(45, "YF1")]; sRtd = Rg(46, "Rtd")
    vYF = Rg(3, "YF")
    L(f"s_and_b32 s{sTmp}, s{sI0}, 0x7ff\ns_sub_u32 s{sTmp}, 2047, s{sTmp}\ns_and_b32 s47, s{sI1}, 0x7ff\ns_sub_u32 s47, 2047, s47\nv_add_u32 v{s0}, 16, v{vRow}")
    L(f"v_cmp_eq_u32 s[{sMa}:{sMa+1}], s{sTmp}, v{vRow}\nv_cmp_eq_u32 s[{sMb}:{sMb+1}], s{sTmp}, v{s0}\nv_cmp_eq_u32 s[{sM1}:{sM1+1}], s47, v{vRow}\nv_cmp_eq_u32 s[{sRt_}:{sRt_+1}], s47, v{s0}")
    L(f"s_or_b64 s[{sMa}:{sMa+1}], s[{sMa}:{sMa+1}], s[{sM1}:{sM1+1}]\ns_or_b64 s[{sMb}:{sMb+1}], s[{sMb}:{sMb+1}], s[{sRt_}:{sRt_+1}]\ns_or_b32 s{sRtd}, s{sMa}, s{sMb}")
    L(f"v_lshrrev_b32 v{vYF}, 1, v{vL}\nv_min_u32 v{vYF}, 23, v{vYF}\nv_mul_u32_u24 v{vYF}, 2560, v{vYF}\nv_and_b32 v{s0}, 1, v{vL}\nv_lshl_add_u32 v{vYF}, v{s0}, 2, v{vYF}")
    for r in range(2): L(f"s_lshr_b32 s{sYF[r]}, s{sXc[2*r]}, 7\ns_lshl_b32 s{sYF[r]}, s{sYF[r]}, 8\ns_bfe_u32 s{sTmp}, s{sXc[2*r]}, 0x10006\ns_lshl_b32 s{sTmp}, s{sTmp}, 3\ns_add_u32 s{sYF[r]}, s{sYF[r]}, s{sTmp}\ns_add_u32 s{sYF[r]}, s{sYF[r]}, {FLAGS + 160}")
    L(f"s_cmp_lg_u32 s{sRtd}, 0\ns_cselect_b32 s{sYF[0]}, s{sYF[0]}, {BADOFF}\ns_cselect_b32 s{sYF[1]}, s{sYF[1]}, {BADOFF}")
    ypoll = [f"buffer_load_dword v{22+r}, v{vYF}, {WSR}, s{sYF[r]} offen sc1" for r in range(2)]
    for l in ypoll: L(l + " ; @issue LA")
    SG_ = max(udone[(2, 0)] + 1, ylast + 3)
    R.seq_(L.l, SG_, early=SG_ + 30)
    XF = [[unit(3, 0), unit(3, 1)], [56, 64]]; GF_ = [[unit(3, 2), unit(3, 3)], [72, 80]]
    def unpack(k, r):
        for x in range(2):
            for i in range(4):
                k(f"v_lshlrev_b32 v{XF[r][x]+2*i}, 16, v{XU[2*r+x]+i}\nv_and_b32 v{XF[r][x]+2*i+1}, 0xffff0000, v{XU[2*r+x]+i}\nv_lshlrev_b32 v{GF_[r][x]+2*i}, 16, v{GU_[2*r+x]+i}\nv_and_b32 v{GF_[r][x]+2*i+1}, 0xffff0000, v{GU_[2*r+x]+i}")
    L = Lines(); unpack(L, 0); R.seq_(L.l, udone[(3, 0)] + 0.7)
    for lab, g in (("A1", 96), ("A5", 480), ("B", GB), ("B8", TB[8])): pass
    if OPT.get("fine"):
        for g in [96 * p for p in range(1, 10)] + TB[::2] + [GF, GCs] + [TC[T] for T in (4, 6, 8, 10)] + [SD[s] for s in range(NKM // 2)] + sorted(CS.values()): R.fix(g - 1, ".stamp 9")
    if OPT.get("grid"):
        g0 = {"A": 0, "B": GB, "C": GCs - 100, "D": GD}[OPT["grid"]]
        for g in range(g0, min(NG, g0 + 62 * 16), 16): R.fix(g, ".stamp 55")
    R.fix(NG - 8, ".rt")
    marks = [("A", 0), ("Atm", 960 - 48 * TM), ("B0", GB), ("B2", TB[2]), ("B14", TB[14]), ("F", GF), ("C", GCs), ("C4", TC[4]), ("D", GD), ("Dcol", CS[(0, 0)]), ("Dp3", CS[(4, 0)])]
    R.emit(k, verbose, marks)
    if R.bad: raise SystemExit("scheduler found problems")
    if verbose > 1 or OPT.get("plan"):
        for obj, it in plan: print(f"     dma {obj}: want {it.early} placed {it.gap} dl {it.dl:.0f}")
    k(".stamp 7")
    k("post_code:")
    TK = ".stamp 55\n" if OPT.get("grid3") else ""
    P = lambda r: f"v[{r}:{r+1}]"
    ACC = [unit(4, 2), unit(4, 3), unit(0, 2), unit(0, 3)]
    def accum(bit):
        for x in range(2):
            for b_ in range(2):
                d = q("v", ACC[2 * (bit >> 3) + x] + 4 * b_)
                k(f"{MF} {d}, {q('v', SEL + 4*b_)}, {q('v', LAND[bit] + 4*x)}, {d}")
    def final(r):
        for x in range(2):
            a_ = ACC[2 * r + x]
            for i in range(4): k(f"v_pk_fma_f32 {P(a_+2*i)}, {P(a_+2*i)}, {P(GF_[r][x]+2*i)}, {P(XF[r][x]+2*i)}")
            for i in range(4): k(f"v_cvt_pk_bf16_f32 v{a_+i}, v{a_+2*i}, v{a_+2*i+1}")
            k(f"s_nop 1\nv_permlane16_swap_b32 v{a_}, v{a_+2}\nv_permlane16_swap_b32 v{a_+1}, v{a_+3}")
            k(f"buffer_store_dwordx4 {q('v', a_)}, v{vXo}, {SR(sV)}, s{sXc[2*r+x]} offen {OPT.get('outst', 'sc1')}")
    sNew, sPrev, sDone, sSum, sAge = 59, 60, 78, 79, 47
    k(TK + "s_waitcnt vmcnt(@) ; @need LA")
    for bit in inreg:
        if 4 <= bit < 8: accum(bit)
    for pos in range(NFL, 5):
        pre, st = pflag(pos)
        for l in pre: k(l)
        k(f"s_waitcnt vmcnt(@)"); k(st)
    k(TK + f"s_cmp_lg_u32 s{sRtd}, 0\ns_cbranch_scc1 routed_a\nrouted_a_ret:")
    lb = sum(1 << b_ for b_ in inreg if b_ < 4)
    k(f"s_and_b32 s{sPrev}, s{sIss}, {lb}\ns_andn2_b32 s{sSum}, s{sIss}, {lb}\ns_mov_b32 s{sAge}, {O('age0', 2)}\ns_andn2_b32 s{sDone}, 2, s{sOwn} ; @scc\ns_cbranch_scc1 ev_loop")
    k(spoll)
    for bit in inreg:
        if bit >= 8: accum(bit)
    order = [1, 2, 3, 4, 5, 6, 7] + list(range(9, 16))
    k(f"ev_loop:\ns_mov_b32 s{sNew}, 0\ns_cmp_ge_u32 s{sIss}, 0xff00\ns_cbranch_scc1 ev_own")
    for bit in range(15, 7, -1): k(f"s_cmp_eq_u32 s{FW0+bit}, s{sTag}\ns_addc_u32 s{sNew}, s{sNew}, s{sNew} ; @bits")
    k("ev_own:")
    for bit in range(7, -1, -1): k(f"s_cmp_eq_u32 s{FW0+bit}, s{sTag}\ns_addc_u32 s{sNew}, s{sNew}, s{sNew} ; @bits")
    k(f"s_andn2_b32 s{sNew}, s{sNew}, s{sIss} ; @scc\ns_cbranch_scc0 ev_issued")
    k(TK + f"s_or_b32 s{sIss}, s{sIss}, s{sNew}\ns_or_b32 s{sPrev}, s{sPrev}, s{sNew}\ns_mov_b32 s{sAge}, 0")
    for n_, bit in enumerate(order):
        if bit in (4, 9): k(f"s_lshr_b32 s{sTmp}, s{sNew}, {bit} ; @scc\ns_cbranch_scc0 ev_issued")
        k(f"s_bitcmp1_b32 s{sNew}, {bit}\ns_cbranch_scc0 ev_i{bit}"); k(src(bit, sLd))
        for l in land(bit, sLd): k(l + " ; @dyn")
        k(f"ev_i{bit}:")
    k(f"ev_issued:\ns_cmp_eq_u32 s{sIss}, 0xffff\ns_cbranch_scc1 ev_acc\n{spoll}\ns_add_u32 s{sSpin}, s{sSpin}, 1\ns_cmp_gt_u32 s{sSpin}, {SPB()}\ns_cbranch_scc1 ev_done")
    if O("psleep", 4): k(f"s_sleep {O('psleep', 4)}")
    k(f"s_add_u32 s{sAge}, s{sAge}, 1\ns_cmp_eq_u32 s{sAge}, {O('age', 3)}\ns_cbranch_scc0 ev_loop")
    k(f"ev_acc:\ns_waitcnt vmcnt(0)\n{TK}s_or_b32 s{sSum}, s{sSum}, s{sPrev}")
    for bit in order:
        if bit in (4, 9): k(f"s_lshr_b32 s{sTmp}, s{sPrev}, {bit} ; @scc\ns_cbranch_scc0 ev_summed")
        k(f"s_bitcmp1_b32 s{sPrev}, {bit}\ns_cbranch_scc0 ev_s{bit}"); accum(bit); k(f"ev_s{bit}:")
    k(f"ev_summed:\ns_mov_b32 s{sPrev}, 0\ns_cmp_lg_u32 s{sRtd}, 0\ns_cbranch_scc1 routed\nrouted_ret:")
    for r in (0, 1):
        k(f"s_bfe_u32 s{sTmp}, s{sSum}, {0x80000 | (8*r)}\ns_cmp_eq_u32 s{sTmp}, 0xff\ns_cbranch_scc0 ev_f{r}\ns_bitcmp1_b32 s{sDone}, {r}\ns_cbranch_scc1 ev_f{r}\ns_bitset1_b32 s{sDone}, {r}")
        if r: unpack(k, r)
        final(r); k(TK + f"ev_f{r}:")
    k(f"s_cmp_eq_u32 s{sDone}, 3\ns_cbranch_scc0 ev_loop\nev_done:")
    k(f"s_or_b32 s{sTmp}, s2, s{sW}\ns_cmp_eq_u32 s{sTmp}, 0\ns_cselect_b32 s{sTmp}, 0, {OOB}\ns_add_u32 s{sTmp}, s{sTmp}, {EPOCH}\nbuffer_store_dword v{vTg}, v{vZ}, {WSR}, s{sTmp} offen")
    k(".stamp 7")
    k(f"{name}_fin:")
    k(f"{name}_end:\ns_endpgm")
    for i in range(6):
        k(f"spin_o{i}:\n{osl}\ns_add_u32 s{sSpin}, s{sSpin}, 1\ns_cmp_gt_u32 s{sSpin}, {SPB()}\ns_waitcnt lgkmcnt(0)\ns_cbranch_scc1 spin_o{i}_ret")
        for l in ocheck: k(l)
        k(f"s_cmp_gt_u32 s78, {5-i}\ns_cbranch_scc1 spin_o{i}\ns_branch spin_o{i}_ret")
    YQ = unit(3, 0)
    RS, YA, T1, T2, XX, ST, XN_, Y = 2, 5, 12, 13, 8, 10, 16, YQ
    ycond = f"v_xor_b32 v22, s{sTag}, v22\nv_xor_b32 v23, s{sTag}, v23\nv_or_b32 v22, v22, v23\nv_cmp_ne_u32 vcc, 0, v22"
    k("routed_a:"); k(ycond); k("s_cbranch_vccnz spin_y\nspin_y_ret:")
    k(f"v_cmp_lt_u32 vcc, 31, v{vL}\nv_mov_b32 v{RS}, s{sI0}\nv_mov_b32 v{YA}, s{sI1}\nv_cndmask_b32 v{RS}, v{RS}, v{YA}, vcc")
    k(f"v_and_b32 v{T1}, 8, v{vL}\nv_mov_b32 v{YA}, s{sXc[0]}\nv_mov_b32 v{T2}, s{sXc[2]}\nv_cmp_ne_u32 vcc, 0, v{T1}\ns_nop 1\nv_cndmask_b32 v{YA}, v{YA}, v{T2}, vcc")
    k(f"v_and_b32 v{T2}, 7, v{vL}\nv_lshl_add_u32 v{YA}, v{T2}, 3, v{YA}")
    k(f"v_lshrrev_b32 v{T1}, 5, v{vL}\nv_bfe_u32 v{T2}, v{vL}, 4, 1\nv_lshl_add_u32 v{T1}, v{T2}, 1, v{T1}\nv_mul_u32_u24 v{T1}, 2560, v{T1}\nv_lshl_add_u32 v21, v{YA}, 1, v{T1}\ns_mov_b32 s{sTmp}, {YP}")
    for c in range(12): k(f"buffer_load_dwordx4 {q('v', YQ + 4*c)}, v21, {WSR}, s{sTmp} offen sc1\ns_add_u32 s{sTmp}, s{sTmp}, 10240")
    k(f"v_and_b32 v{T1}, 0x7ff, v{RS}\nv_sub_u32 v{T1}, 2047, v{T1}\nv_mul_u32_u24 v{T2}, 1280, v{T1}\nv_add_u32 v{T2}, v{T2}, v{YA}\nv_lshlrev_b32 v{T1}, 3, v{T1}\ns_mov_b32 s{sTmp2}, {STATS}")
    k(f"buffer_load_dwordx2 v[{XX}:{XX+1}], v{T2}, {SR(sK)}, 0 offen\nbuffer_load_dwordx2 v[{ST}:{ST+1}], v{T1}, {WSR}, s{sTmp2} offen sc1")
    k(f"v_and_b32 v{RS}, 0xffff0000, v{RS}\nv_ashrrev_i32 v{T1}, 31, v{RS}\nv_not_b32 v{T1}, v{T1}\nv_or_b32 v{T1}, 0x80000000, v{T1}\nv_xor_b32 v{RS}, v{RS}, v{T1}\nv_and_b32 v{RS}, 0xffff0000, v{RS}")
    k(f"v_mul_f32 v{RS}, s{sNL}, v{RS}\nv_exp_f32 v{RS}, v{RS}\ns_nop 0\nv_add_f32 v{RS}, 1.0, v{RS}\nv_rcp_f32 v{RS}, v{RS}\ns_nop 0")
    round_bf16(k, RS, RS)
    RL = 60 * KB
    k(f"s_lshl_b32 s{sTmp}, s{sW}, 9\ns_add_u32 s{sTmp}, s{sTmp}, {RL}\nv_lshlrev_b32 v{T1}, 3, v{vL}\nv_add_u32 v{T1}, s{sTmp}, v{T1}")
    k(f"v_lshrrev_b32 v{T2}, 4, v{vL}\nv_lshlrev_b32 v{T2}, 3, v{T2}\nv_add_u32 v{T2}, s{sTmp}, v{T2}\nv_add_u32 v21, 256, v{T2}")
    k(f"v_cndmask_b32 v22, v{T2}, v21, s[{sM1}:{sM1+1}]\nv_cndmask_b32 v23, v{T2}, v21, s[{sRt_}:{sRt_+1}]")
    k("s_branch routed_a_ret\nrouted:")
    for c in range(1, 12): k(f"v_pk_add_f32 {P(Y)}, {P(Y)}, {P(Y+4*c)}\nv_pk_add_f32 {P(Y+2)}, {P(Y+2)}, {P(Y+4*c+2)}")
    for e in range(4): k(f"v_mov_b32 v{Y+4+e}, v{Y+e}")
    for i in range(2): k(f"v_lshlrev_b32 v{XN_+2*i}, 16, v{XX+i}\nv_and_b32 v{XN_+2*i+1}, 0xffff0000, v{XX+i}")
    for e in range(4): k(f"v_permlane16_swap_b32 v{Y+e}, v{Y+4+e}")
    for e in range(4):
        k(f"v_sub_f32 v{XN_+e}, v{XN_+e}, v{ST}"); round_bf16(k, XN_ + e, XN_ + e); k(f"v_mul_f32 v{XN_+e}, v{XN_+e}, v{ST+1}"); round_bf16(k, XN_ + e, XN_ + e)
    k(f"v_pk_add_f32 {P(Y)}, {P(Y)}, {P(Y+4)}\nv_pk_add_f32 {P(Y+2)}, {P(Y+2)}, {P(Y+6)}")
    for e in range(4):
        y_ = Y + e
        round_bf16(k, y_, y_); k(f"v_mul_f32 v{y_}, v{y_}, v{RS}"); round_bf16(k, y_, y_); k(f"v_add_f32 v{y_}, v{y_}, v{XN_+e}"); round_bf16(k, y_, y_)
        k(f"v_mul_f32 v{Y+4+e}, s{sNL}, v{y_}")
    for e in range(4): k(f"v_exp_f32 v{Y+4+e}, v{Y+4+e}")
    for e in range(4): k(f"v_add_f32 v{Y+4+e}, 1.0, v{Y+4+e}")
    for e in range(4): k(f"v_rcp_f32 v{Y+4+e}, v{Y+4+e}")
    for e in range(4): k(f"v_mul_f32 v{Y+e}, v{Y+e}, v{Y+4+e}")
    k(f"v_cvt_pk_bf16_f32 v{Y}, v{Y}, v{Y+1}\nv_cvt_pk_bf16_f32 v{Y+1}, v{Y+2}, v{Y+3}\nds_write_b64 v{T1}, {P(Y)}")
    for x in range(2):
        k(f"s_mov_b64 exec, s[{(sMa, sMb)[x]}:{(sMa, sMb)[x]+1}]")
        for r in range(2): k(f"ds_read2_b64 {q('v', GU_[2*r+x])}, v{22+x} offset0:{8*r} offset1:{8*r+4}")
    k(f"s_mov_b64 exec, -1\ns_mov_b32 s{sRtd}, 0\ns_waitcnt lgkmcnt(0)")
    unpack(k, 0)
    k("s_branch routed_ret")
    spin_code(k, "spin_y", "\n".join(ypoll), ycond, "spin_y_ret")
    spin_code(k, "spin_rec", "\n".join(recl), reccond, "spin_rec_ret")
    spin_code(k, "spin_gu", gpoll, f"v_cmp_ne_u32 vcc, s{sTag}, v23", "spin_gu_ret")
    KF = 216; sH, sPass = 77, 78
    k("rare:\ns_nop 7\ns_nop 7")
    k(f"v_and_b32 v21, 15, v{vL}\nv_mul_u32_u24 v21, 384, v21\nv_bfe_u32 v22, v{vL}, 4, 1\nv_bfe_u32 v23, v{vL}, 5, 1\nv_lshl_add_u32 v22, v22, 1, v23\nv_lshl_add_u32 v21, v22, 4, v21")
    for r in range(16): k(f"v_mov_b32 v{PQ[0]+r}, 0")
    for sub in range(4): k(f"v_mov_b32 v{vLi[sub]}, 0xff800000")
    k(f"s_mov_b32 s{sPass}, 0\nrare_pass:\ns_mov_b32 s{sH}, 0\nrare_loop:")
    for i in range(6): k(f"buffer_load_dwordx4 {q('a', KF+4*i)}, v21, {SR(sK)}, s{sH} offen offset:{64*i}")
    k("s_waitcnt vmcnt(0)")
    for i in range(6):
        for sub in range(4): k(f"{MF} {q('v', PQ[4+sub])}, {q('a', KF+4*i)}, {q('a', Qa(i, sub))}, {q('v', PQ[4+sub] if i else PQ[sub])}")
    k(f"s_nop 7\ns_cmp_eq_u32 s{sPass}, 0\ns_cbranch_scc0 rare_p2 ; @second")
    for sub in range(4):
        s = PQ[4 + sub]; k(f"v_max3_f32 v{vLi[sub]}, v{vLi[sub]}, v{s}, v{s+1}\nv_max3_f32 v{vLi[sub]}, v{vLi[sub]}, v{s+2}, v{s+3}")
    k(f"s_add_u32 s{sH}, s{sH}, 6144\ns_cmp_lt_u32 s{sH}, {32*6144}\ns_cbranch_scc1 rare_loop")
    for sub in range(4):
        xgroup_reduce(k, vLi[sub], 22, "v_max_f32")
        for r in range(4): k(f"v_sub_f32 v{PQ[sub]+r}, 0, v{vLi[sub]}")
    k(f"s_mov_b32 s{sPass}, 1\ns_branch rare_pass\nrare_p2:")
    for r in range(16): k(f"v_exp_f32 v{PQ[4]+r}, v{PQ[4]+r}")
    for h in range(32):
        t, kt = h >> 1, h & 1
        k(f"s_cmp_eq_u32 s{sH}, {h*6144}\ns_cbranch_scc0 rare_d{h}")
        for sub in range(4):
            s = PQ[4 + sub]; f_, r_ = Pfin(t, sub); r_ += 2 * kt
            if f_ == "v": k(f"v_cvt_pk_bf16_f32 v{r_}, v{s}, v{s+1}\nv_cvt_pk_bf16_f32 v{r_+1}, v{s+2}, v{s+3}")
            else: k(f"v_cvt_pk_bf16_f32 v22, v{s}, v{s+1}\nv_cvt_pk_bf16_f32 v23, v{s+2}, v{s+3}\nv_accvgpr_write_b32 a{r_}, v22\nv_accvgpr_write_b32 a{r_+1}, v23")
        k(f"rare_d{h}:")
    k(f"s_add_u32 s{sH}, s{sH}, 6144\ns_cmp_lt_u32 s{sH}, {32*6144}\ns_cbranch_scc1 rare_loop")
    for t in range(16):
        off = OBJ[f"V0_{t}"][0] - 72 * KB
        for T in range(2): k(f"ds_read_b64_tr_b16 a[{KF+4*T}:{KF+4*T+1}], v{vT[T]} offset:{off}\nds_read_b64_tr_b16 a[{KF+4*T+2}:{KF+4*T+3}], v{vT[T]} offset:{off+2048}")
        k("s_waitcnt lgkmcnt(0)")
        for T in range(2):
            for sub in range(4): k(f"{MF} {q('a', acc0(T, sub))}, {q('a', KF+4*T)}, {q(*Pfin(t, sub))}, {q('a', acc0(T, sub)) if t else 0}")
    for r in range(16): k(f"v_mov_b32 v{PQ[0]+r}, 0")
    k("s_nop 1")
    for a in range(8):
        for sub in range(4):
            f_, r_ = Pfin(2 * a, sub); k(f"{SM} {q('v', PQ[sub])}, {q('a', aONE)}, {q(f_, r_, 8)}, v{vIdx}")
    k("s_nop 15")
    for sub in range(4): k(f"v_add_f32 v{PQ[sub]}, v{PQ[sub]}, v{PQ[sub]+1}")
    for sub in range(4): k(f"v_rcp_f32 v{vLi[sub]}, v{PQ[sub]}")
    k("s_nop 1\ns_branch rare_ret\ncode_end:\ns_endpgm")
    k.lines = [strip_names(l) for l in k.lines]
    if OPT.get("grid") or OPT.get("grid3"): k.lines = [l for l in k.lines if not l.strip().startswith(".stamp") or l.strip() == ".stamp 55"]
    return k
```

```python
from common import *
from sched import Region
from small import tr_addr, dma_chunk_tr, wrow
import math

SLOT = 24576
SPARE = 6 * SLOT
RING = 6; AHEAD = 4; WGRP = 2
FR = 192
BIG = 2.0 ** 16

vL = 1
vGA, vGB = 2, 3
vKA, vKB, vVA, vVB = 4, 5, 6, 7
vT = [8, 9, 10, 11]; vTb = [12, 13, 14, 15]
vK = [16, 17]; vKb = [18, 19]
vLs = [20, 21, 22, 23]; vPs = [24, 25, 26, 27]
vX = 28; vC = 29; vC2 = 30; vC3 = 31
vNM = 32; vE = 48; vW = 56
def oct_(i, sub): return 64 + (i * 4 + sub) * 8
def Qf(i, sub): return q("v", oct_(i, sub))
def hole(n): return 64 + n * 8 + 4
def Sreg(buf, kt, sub): return hole(buf * 8 + kt * 4 + sub)
def Preg(buf, sub): return hole(16 + buf * 4 + sub)
def Oacc(dt, sub): return (dt * 4 + sub) * 4
XB = [("a", 224), ("v", 32), ("a", 160)]
def xfrag(buf, ks, sub): return q(XB[buf][0], XB[buf][1] + (ks * 4 + sub) * 4)
def Pacc(nt, sub):
    n = nt * 4 + sub
    if n < 8: return ("a", 224 + 4 * n)
    if n < 32: return ("v", hole(n - 8))
    return ("v", 32 + 4 * (n - 32))
sW = 3
sG, sK, sV, sXN, sWS, sF1, sF2 = 8, 12, 16, 20, 24, 28, 32
sGo, sGs, sKo, sKs, sVo = 36, 37, 38, 39, 40
sR = [41, 42, 43]; sRt = 44
sIt = 45; sXo = 46; sM = 47; sRd = 48; sWoff = 49
sHead, sJ, sQt, sGrp, sQ64 = 50, 51, 52, 53, 54
sOo = 55; sTmp = 56; sTmp2 = 57; sJob = 58; sA = 59; sB = 60; sFo = 61; sFo2 = 62; sWOo = 63
pX, pK, pV, pWQ, pWO, pWR, pG, pU, pD, pOUT, pWS = 64, 66, 68, 70, 72, 76, 78, 80, 82, 84, 86
sPC = 74; sSl = 88; sNL = 92; sIC = 93; sSpin = 101; sXid = 76; sI0 = 70; sI1 = 71
sFl = 4; sFb = 5; sTo = 6; sTag = 7
OOB = "0x7ffffff0"

def afrag(f): return q("a", FR + (f % RING) * 4)
def rd_tr(f, mt, ks, tag, regs=None, extra=0):
    r = FR + (f % RING) * 4
    off = ks * 12288 + (mt >> 2) * 1024 + extra
    a = (regs or vT)[mt & 3]
    return [f"ds_read_b64_tr_b16 a[{r}:{r+1}], v{a} offset:{off}",
            f"ds_read_b64_tr_b16 a[{r+2}:{r+3}], v{a} offset:{off+6144}"]
def rd_k(f, tile, kt, i, tag):
    off = (4 * tile + 2 * kt) * 3072 + (i >> 1) * 1024
    return [f"ds_read_b128 {afrag(f)}, v{vK[i&1]} offset:{off}"]

def place_reads(R, reads, nf, per=4, early_waits=()):
    for f in range(nf):
        g = f + AHEAD
        if g < len(reads):
            for i, t in enumerate(reads[g]): R.fix(per * f + i, t)
        nxt = f + 1
        if nxt % WGRP == 0 and nxt < len(reads):
            cnt = sum(len(reads[x]) for x in range(nxt + WGRP, min(nxt + AHEAD, len(reads))))
            R.fix(per * nxt - (2 if nxt in early_waits else 1), f"s_waitcnt lgkmcnt({cnt})")
def first_reads(k, reads):
    for f in range(AHEAD):
        for t in reads[f]: k(t)
    k(f"s_waitcnt lgkmcnt({sum(len(reads[x]) for x in range(WGRP, AHEAD))})")

def dma_lines(srd, so, va, vb, mbase, mconst, tag, over=None):
    L = []
    for i in range(6):
        imm = 128 * (i % 3)
        L.append((f"s_add_u32 m0, s{mbase}, {mconst + i*1024 - imm}",
                  f"buffer_load_dwordx4 v{va if i < 3 else vb}, s[{srd}:{srd+3}], s{so} offen offset:{imm}{' nt' if (srd in (sK, sV) and OPT.get('kvnt')) else ''} lds ; @issue {tag}" + (f" @over {over}" if over else "")))
    return L
def dma_now(k, *a, **kw):
    for m, d in dma_lines(*a, **kw): k(m); k("s_nop 0"); k(d)
def dma_sched(R, gaps, *a, deps=(), **kw):
    prev = None
    for (m, d), g in zip(dma_lines(*a, **kw), gaps):
        a1 = R.add(m, earliest=g - 1, prio=g - 2000, deps=([(prev, 0)] if prev else list(deps)))
        prev = R.add(d, earliest=g, deps=[(a1, 1)])
    return prev
def barrier_at(R, gap, need):
    R.fix(gap - 1, f"s_waitcnt vmcnt(@)")
    return R.fix(gap, "s_barrier")

def softmax_items(R, sbuf, pbuf, g0, g1, sub_first=None, chk_label=None, after=()):
    n = 32; span = g1 - g0 - 6
    cons = [None] * 8
    fin = []
    idx = 0
    for sub in range(4):
        prev_add = None
        for h in range(4):
            pair = []
            for u in range(2):
                el = h * 2 + u
                src = Sreg(sbuf, el >> 2, sub) + (el & 3)
                t = vE + idx % 8
                pr = g0 + span * idx / n
                deps = list(cons[idx % 8] or [])
                if sub_first is not None: deps.append((sub_first[(sub, el)], 0))
                it = R.add(f"v_exp_f32 v{t}, v{src}", earliest=g0, prio=pr, deps=deps)
                pair.append((it, t, idx % 8)); idx += 1
            (e0, t0, s0), (e1, t1, s1) = pair
            pr = g0 + span * idx / n + 1
            cv = R.add(f"v_cvt_pk_bf16_f32 v{Preg(pbuf, sub)+h}, v{t0}, v{t1}", earliest=g0, prio=pr, deps=[(e0, 1), (e1, 1)])
            if h == 0:
                a = R.add(f"v_add_f32 v{vPs[sub]}, v{t0}, v{t1}", earliest=g0, prio=pr, deps=[(e0, 1), (e1, 1)] + list(after))
                cons[s0] = [(cv, 0), (a, 0)]; cons[s1] = [(cv, 0), (a, 0)]
            else:
                a0 = R.add(f"v_add_f32 v{vPs[sub]}, v{vPs[sub]}, v{t0}", earliest=g0, prio=pr - 1, deps=[(e0, 1), (prev_add, 0)])
                a = R.add(f"v_add_f32 v{vPs[sub]}, v{vPs[sub]}, v{t1}", earliest=g0, prio=pr, deps=[(e1, 1), (a0, 0)])
                cons[s0] = [(cv, 0), (a0, 0)]; cons[s1] = [(cv, 0), (a, 0)]
            prev_add = a
            fin.append(cv)
        fin.append(prev_add)
    c1 = R.add(f"v_max3_f32 v{vC}, v{vPs[0]}, v{vPs[1]}, v{vPs[2]}", earliest=g0, prio=g1 - 5, deps=[(x, 0) for x in fin[:15]])
    c2 = R.add(f"v_max_f32 v{vC}, v{vC}, v{vPs[3]}", earliest=g0, prio=g1 - 4, deps=[(c1, 0)] + [(x, 0) for x in fin])
    c3 = R.add(f"v_cmp_nle_f32 vcc, v{vC}, v{vC2}", earliest=g0, prio=g1 - 3, deps=[(c2, 0)])
    c4 = R.add(f"s_cbranch_vccnz {chk_label}\n{chk_label}_ret:", earliest=g1, latest=g1, prio=g1 - 2, deps=[(c3, 0)])
    return c4

def ladd_items(R, g0, dep=None):
    return [(R.add(f"v_add_f32 v{vLs[sub]}, v{vLs[sub]}, v{vPs[sub]}", earliest=g0, prio=g0 - 10, deps=[(dep, 0)] if dep else []), 0) for sub in range(4)]

def xgroup_reduce(k, r, t, op):
    for sw in ("v_permlane16_swap_b32", "v_permlane32_swap_b32"):
        k(f"v_mov_b32 v{t}, v{r}\ns_nop 1\n{sw} v{r}, v{t}\ns_nop 1\n{op} v{r}, v{r}, v{t}")

def rare_path(k, label, cur, other, has_other=True):
    k(f"{label}:\ns_nop 7\ns_nop 7")
    for sub in range(4):
        s0, s1 = Sreg(cur, 0, sub), Sreg(cur, 1, sub)
        d = vW; f = vW + 1; t = vW + 2
        k(f"v_max3_f32 v{d}, v{s0}, v{s0+1}, v{s0+2}\nv_max3_f32 v{d}, v{d}, v{s0+3}, v{s1}\nv_max3_f32 v{d}, v{d}, v{s1+1}, v{s1+2}\nv_max3_f32 v{d}, v{d}, v{s1+3}, 0")
        xgroup_reduce(k, d, t, "v_max_f32")
        k(f"v_exp_f32 v{f}, -v{d}")
        for r in range(4): k(f"v_sub_f32 v{vNM+4*sub+r}, v{vNM+4*sub+r}, v{d}")
        k(f"v_mul_f32 v{vLs[sub]}, v{vLs[sub]}, v{f}")
        for buf in ([cur, other] if has_other else [cur]):
            for kt in range(2):
                for r in range(4): k(f"v_sub_f32 v{Sreg(buf,kt,sub)+r}, v{Sreg(buf,kt,sub)+r}, v{d}")
        for dt in range(12):
            a = Oacc(dt, sub)
            for r in range(4): k(f"v_accvgpr_read_b32 v{vE+r}, a{a+r}")
            for r in range(4): k(f"v_mul_f32 v{vE+r}, v{vE+r}, v{f}")
            for r in range(4): k(f"v_accvgpr_write_b32 a{a+r}, v{vE+r}")
        for el in range(8): k(f"v_exp_f32 v{vE+el}, v{Sreg(cur, el>>2, sub)+(el&3)}")
        k("s_nop 0")
        for h in range(4): k(f"v_cvt_pk_bf16_f32 v{Preg(cur,sub)+h}, v{vE+2*h}, v{vE+2*h+1}")
        k(f"v_add_f32 v{vPs[sub]}, v{vE}, v{vE+1}")
        for el in range(2, 8): k(f"v_add_f32 v{vPs[sub]}, v{vPs[sub]}, v{vE+el}")
    k(f"s_nop 1\ns_branch {label}_ret")

def subs(n): return range(3, -1, -1) if (n & 1 and int(OPT.get('snake', 2)) == 1) else range(4)

def reorder(M):
    if int(OPT.get("snake", 2)) != 2: return M
    out = []
    for p in range(0, len(M), 8):
        order = [(0, 0), (1, 0), (1, 1), (0, 1), (0, 2), (1, 2), (1, 3), (0, 3)]
        if (p // 8) & 1: order = [(f, 3 - s_) for f, s_ in order]
        out += [M[p + 4 * f + s_] for f, s_ in order]
    return out

def init_c(M):
    seen = set(); out = []
    for l in M:
        if " #" not in l: out.append(l); continue
        l, c0 = l.split(" #"); d = l.split()[1].rstrip(",")
        if d not in seen: seen.add(d); l = l[:l.rindex(", ")] + ", " + c0
        out.append(l)
    return out

def S_order(im): return [(kt, i) for i in range(6) for kt in range(2)] if im else [(kt, i) for kt in range(2) for i in range(6)]
def S_mfmas(buf, f0, zero_c=False):
    M = []
    im = int(OPT.get("sim", 1)) and not zero_c
    if int(OPT.get("chain", 1)):
        for n, (kt, i) in enumerate(S_order(0)):
            for sub in range(4):
                d = q("v", Sreg(buf, kt, sub))
                M.append(f"{MF} {d}, {afrag(f0 + n)}, {Qf(i, sub)}, {d} #{'0' if zero_c else q('v', vNM + 4 * sub)}")
        return init_c(reorder(M))
    for n, (kt, i) in enumerate(S_order(im)):
        for sub in (subs(n) if im else range(4)):
            d = q("v", Sreg(buf, kt, sub))
            c = d if i else ("0" if zero_c else q("v", vNM + 4 * sub))
            M.append(f"{MF} {d}, {afrag(f0 + n)}, {Qf(i, sub)}, {c}")
    return reorder(M) if im else M
def S_reads(tile, f0, tag, first=False): return [rd_k(f0 + n, tile, kt, i, tag) for n, (kt, i) in enumerate(S_order(int(OPT.get("sim", 1)) and not first and not int(OPT.get("chain", 1))))]
def PV_mfmas(buf, f0):
    return reorder([f"{MF} {q('a',Oacc(dt,sub))}, {afrag(f0+dt)}, {q('v',Preg(buf,sub))}, {q('a',Oacc(dt,sub))}" for dt in range(12) for sub in subs(dt)])
def PV_reads(ks, f0, tag): return [rd_tr(f0 + dt, dt, ks, tag) for dt in range(12)]

class Lines:
    def __init__(self): self.l = []
    def __call__(self, s): self.l += [x.strip() for x in s.split("\n") if x.strip()]

def seq_items(R, lines, earliest, deps=(), prio=None, latest=None):
    prev = None; sp = 0; first = True
    for l in lines:
        if l.startswith("s_nop"):
            sp = max(sp, int(l.split()[1]) + 1); continue
        d = list(deps) if first else [(prev, sp)]
        prev = R.add(l, earliest=earliest, deps=d, prio=prio, latest=latest); sp = 0; first = False
    return prev

def code_touch(k, label, vaddr, dst, n, tag):
    k(f"s_getpc_b64 s[{sPC}:{sPC+1}]\n{tag}:\ns_add_u32 s{sPC}, s{sPC}, {label}-{tag}\ns_addc_u32 s{sPC+1}, s{sPC+1}, {'0' if n > 0 else '-1'}")
    k(f"global_load_dword {dst}, v{vaddr}, s[{sPC}:{sPC+1}]")
```

```python
import heapq, re
from hazard import I, pair_need

def classify(text):
    op = text.split()[0]
    if op.startswith("."): return "Z"
    if "s_cbranch" in text: return "J"
    if re.search(r"\b(buffer|global)_store", text): return "T"
    if re.search(r"\b(buffer|global)_", text) or op == "s_barrier": return "M"
    if op.startswith(("v_mfma", "v_smfmac")): return "X"
    if op.startswith("ds_write"): return "Y"
    if op.startswith("ds_"): return "D"
    if op.startswith(("v_exp", "v_rcp", "v_log", "v_rsq", "v_sqrt", "v_permlane")): return "E"
    if op.startswith("v_"): return "V"
    return "S"

NAMED = re.compile(r"\b([vas])(\d+)@(\w+)")
def strip_names(t): return re.sub(r"(\d)@\w+", r"\1", t)
class Rg(int):
    def __new__(cls, n, name): o = int.__new__(cls, n); o.name = name; return o
    def __format__(self, spec): return f"{int(self)}@{self.name}"
    def __str__(self): return f"{int(self)}@{self.name}"

class It:
    __slots__ = "names wnames pre text kind ref seq ins R W AW early late prio lat preds succs npred gap tick dl hard n ctr qi rdy back nowait fixed".split()
    def __repr__(self): return f"<{self.kind} ref={self.ref} {self.text!r}>"

class Prog:
    def __init__(self, name="", LD=7, LV=50):
        self.name = name; self.back = []; self.items = []; self.seq = 0; self.LD = LD; self.LV = LV
        self.tight = []
        self.pre_vm = []
        self.pre_lg = []; self.bad = False
    def _mk(self, text, ref, R=(), W=(), AW=(), kind=None, early=None, late=None, prio=None, lat=None, nowait=False):
        it = It(); it.names = {}; it.wnames = {}; it.pre = False
        for l in text.split("\n"):
            l = l.split(";")[0].strip()
            if not l or l.endswith(":") or l.startswith("."): continue
            i = I(strip_names(l), 0); first, _, rest = l.partition(",")
            for m in NAMED.finditer(rest): it.names.setdefault((m.group(1), int(m.group(2))), m.group(3))
            for m in NAMED.finditer(first):
                r = (m.group(1), int(m.group(2)))
                if r in i.w or r in i.async_w:
                    it.wnames[r] = m.group(3)
                    if r in i.r: it.names.setdefault(r, m.group(3))
                else: it.names.setdefault(r, m.group(3))
        text = strip_names(text)
        it.text = text; it.kind = kind or classify(text); it.ref = ref; it.seq = self.seq; self.seq += 1
        lines = [l.strip() for l in text.split("\n")]
        it.ins = [I(l.split(";")[0].strip(), 0) for l in lines if l and not l.endswith(":") and not l.startswith(".")]
        it.R = set(R); it.W = set(W); it.AW = set(AW); wr = set()
        it.ctr = None
        for i in it.ins:
            it.R |= set(i.r) - wr; it.W |= set(i.w); wr |= set(i.w)
            if i.kind == "smem" and nowait: it.W |= set(i.async_w)
            else: it.AW |= set(i.async_w)
            if i.kind == "vmem": assert it.ctr is None, text; it.ctr = "vm"
            if i.kind == "ds": assert it.ctr is None, text; it.ctr = "lg"
            if i.kind == "smem" and not nowait: it.ctr = "sm"
        it.R.discard(("s", "exec")); it.W.discard(("s", "exec"))
        it.n = sum(i.states for i in it.ins)
        it.early = early; it.late = late; it.prio = prio; it.nowait = nowait
        it.lat = lat if lat is not None else {"lg": self.LD, "vm": self.LV, "sm": 20, None: 0}[it.ctr]
        it.preds = {}; it.succs = []; it.gap = None; it.tick = None; it.back = None; it.qi = None; it.fixed = False
        return it
    def mf(self, text, **kw):
        it = self._mk(text, len(self.back), kind="X", **kw); it.back = len(self.back); self.back.append(it); return it.back
    @property
    def g(self): return len(self.back)
    def add(self, text, ref, **kw):
        it = self._mk(text, ref, **kw); self.items.append(it); return it
    def seq_(self, lines, ref, step=0.0, **kw):
        out = []
        for n, l in enumerate(lines):
            if l.startswith(("s_nop", "s_waitcnt")): continue
            if l.startswith(("s_addc", "s_subb", "s_cselect")) and out: out[-1] = out[-1] + "\n" + l; continue
            out.append(l)
        its = []
        for n, l in enumerate(out):
            k2 = dict(kw)
            for key in ("early", "prio"):
                if k2.get(key) is not None: k2[key] = k2[key] + step * n
            its.append(self.add(l, ref, **k2))
        return its
    def prelude(self, lines):
        for l in lines:
            t = l.strip()
            if t.startswith(("buffer_", "global_")):
                m = re.search(r"@issue (\S+)", t)
                it = self.add(t.split(";")[0].strip(), -2, AW=(["L:" + m.group(1)] if m else []), lat=0); it.pre = True; it.R = set()
    def fix(self, gap, text, **kw):
        it = self.add(text, gap + 0.999, early=gap, late=gap, **kw); it.fixed = True; return it

    def deps(self):
        allit = sorted(self.back + self.items, key=lambda it: (it.ref if it.back is None else it.ref - 1e-6, it.seq))
        lastw = {}; readers = {}
        def edge(p, c, asyn):
            if p is c: return
            e = c.preds.get(p)
            if e is None:
                need = max((pair_need(a, b)[0] for a in p.ins for b in c.ins), default=0)
                c.preds[p] = [need, asyn]; p.succs.append(c)
            elif asyn: e[1] = True
        for c in allit:
            for r in c.R:
                pl = lastw.get(r)
                if pl:
                    for p in pl: edge(p, c, r in p.AW)
                    p = pl[0]
                    if r in c.names and p.wnames.get(r) != c.names[r] and p.kind != "J": print(f"NAME MISMATCH {r} {c.names[r]}: writer {p} reader {c}"); self.bad = True
                elif isinstance(r, str) and not r.startswith("C:"): print("UNDEFINED pseudo", r, c); self.bad = True
            for w in c.W | c.AW:
                for p in lastw.get(w, ()): edge(p, c, w in p.AW and not (w in c.AW and c.ctr == p.ctr))
                for p in readers.get(w, ()): edge(p, c, False)
            for r in c.R: readers.setdefault(r, []).append(c)
            for w in c.W | c.AW:
                if c.kind == "J": lastw[w] = lastw.get(w, [])[:1] + [c]
                else: lastw[w] = [c]; readers[w] = []
        n = len(self.back)
        W = {"V": 0.5, "E": 1.0, "D": 1.0, "S": 0.5, "M": 1.0, "T": 1.0, "Y": 1.0, "J": 1.0, "Z": 0.0}
        for c in reversed(allit):
            if c.back is not None: c.dl = c.hard = c.back; continue
            dl = hard = n - 1 if c.late is None else c.late
            for s in c.succs:
                need, asyn = s.preds[c]
                lat = c.lat if asyn else 0
                if s.back is not None:
                    hard = min(hard, s.back - 1); dl = min(dl, s.back - 1 - lat - (1 if need else 0))
                else:
                    hard = min(hard, s.hard); dl = min(dl, s.dl - lat - W[s.kind] - 0.34 * need)
            c.dl = dl; c.hard = hard
        return allit

    def emit(self, k, verbose=True, marks=()):
        allit = self.deps()
        n = len(self.back)
        out = []; tick = 0
        vmq = []; lgq = []; ret = {"vm": 0, "lg": 0}; Q = {"vm": vmq, "lg": lgq}
        smq = []
        for it in allit: it.npred = len(it.preds)
        heap = []; ready = []
        def release(it, g):
            r = 0 if it.early is None else it.early
            for p, (need, asyn) in it.preds.items():
                if asyn: r = max(r, p.gap + p.lat)
            it.rdy = r
            heapq.heappush(heap, (min(r, it.hard), it.seq, it))
        key = lambda it: (min(it.dl, it.prio) if it.prio is not None else min(it.dl, it.ref if it.early is None else max(it.early, min(it.ref, it.dl))), it.seq)
        for it in self.items:
            if it.pre:
                it.gap = -1; it.tick = -100; it.qi = len(vmq); vmq.append(it)
                for s_ in it.succs: s_.npred -= 1
        for it in self.items:
            if it.npred == 0 and not it.pre: release(it, -1)
        est = [0.0]; stats = {"nop": 0, "wait": 0, "forced": 0}
        def raw(text, states=1):
            nonlocal tick
            out.append(text); tick += states
        def needs(it):
            nd = {}
            for p, (need, asyn) in it.preds.items():
                if asyn and p.gap is not None:
                    if p.ctr == "sm":
                        if p in smq: nd["sm"] = 0
                    elif p.qi >= ret[p.ctr]: nd[p.ctr] = max(nd.get(p.ctr, -1), p.qi)
            return nd
        def do_wait(nd, g):
            parts = []
            if "vm" in nd:
                ret["vm"] = nd["vm"] + 1; parts.append(f"vmcnt({min(63, len(vmq) - ret['vm'])})")
            if "sm" in nd:
                smq.clear(); ret["lg"] = len(lgq); parts.append("lgkmcnt(0)")
            elif "lg" in nd:
                i = nd["lg"]
                while i + 1 < len(lgq) and lgq[i + 1].gap <= g - self.LD: i += 1
                ret["lg"] = i + 1; parts.append(f"lgkmcnt({min(15, len(lgq) - ret['lg'])})")
            tg = " ; @w " + ",".join(sorted(str(x) for x in vmq[nd["vm"]].AW if isinstance(x, str)) or [vmq[nd["vm"]].text.split(",")[0]]) if "vm" in nd else ""
            raw("s_waitcnt " + " ".join(parts) + tg); stats["wait"] += 1
        def dist_ok(it):
            return max((need - (tick - p.tick - 1) for p, (need, asyn) in it.preds.items() if need), default=0)
        def put(it, g):
            nonlocal tick
            out.append(it.text); tick += it.n; it.tick = tick - 1; it.gap = g
            if it.ctr in ("vm", "lg"): it.qi = len(Q[it.ctr]); Q[it.ctr].append(it)
            elif it.ctr == "sm": smq.append(it)
            if it.back is None: ready.remove(it)
            for s in it.succs:
                s.npred -= 1
                if s.npred == 0 and s.back is None: release(s, g)
        def pull(g):
            ch = False
            while heap and heap[0][0] <= g:
                ready.append(heapq.heappop(heap)[2]); ch = True
            if ch: ready.sort(key=key)
        COST = {"Z": 0, "M": 3, "T": 5, "Y": 4, "D": 1, "E": 2, "V": 1, "J": 2, "S": 1}
        gapcost = []
        for g in range(-1, n):
            t = 0
            if g >= 0:
                m = self.back[g]
                assert m.npred == 0, (g, m.text, [p for p in m.preds if p.gap is None])
                nd = needs(m)
                if nd: do_wait(nd, g); gapcost[-1] += 4; stats["forced"] += 1
                d = dist_ok(m)
                if d > 0: raw(f"s_nop {d-1}", d); gapcost[-1] += 4 * d; stats["nop"] += d
                put(m, g)
            sm = g >= 0 and self.back[g].text.startswith("v_smfmac")
            tight = any(a <= g < b for a, b in self.tight)
            def place(it):
                nonlocal t
                nd = needs(it)
                if nd: do_wait(nd, g); t += 1
                d = dist_ok(it)
                if d > 0: raw(f"s_nop {d-1}", d); t += d; stats["nop"] += d
                if it.kind in "DVE": t = max(t, 2 if (sm and it.kind != "D") else 1)
                if it.kind == "D" and t >= 2: t += 1
                put(it, g); t += COST[it.kind] + (it.n - 1 if it.kind in "SMTV" else (max(0, it.n - 2) if it.kind == "J" else 0))
                pull(g)
            pull(g)
            ok = lambda it: it.rdy <= g and dist_ok(it) <= 0
            free = lambda it: ok(it) and not needs(it)
            mw = {}
            for h in range(g + 1, min(n, g + 4)):
                nd = needs(self.back[h])
                for c_, i in nd.items():
                    if h == g + 1 or Q[c_][i].gap <= g - Q[c_][i].lat: mw[c_] = max(mw.get(c_, -1), i)
            must = g + 1 < n and bool(needs(self.back[g + 1]))
            if len(lgq) - ret["lg"] >= 11 and "lg" not in mw: mw["lg"] = len(lgq) - 9; must = True
            if len(vmq) - ret["vm"] >= 60 and "vm" not in mw: mw["vm"] = len(vmq) - 50; must = True
            urgent = [it for it in ready if it.kind in "DJ" and it.dl <= g - 1 and ok(it)]
            whole = [it for it in ready if it.kind in "MTY" and free(it) and not it.fixed]
            fixedw = [it for it in ready if it.kind in "MTY" and it.fixed and it.late == g]
            if g >= 0 and fixedw:
                pass
            elif g >= 0 and whole and ((not must and not urgent) or whole[0].dl <= g - 2 or g - whole[0].rdy >= 6):
                if must: do_wait(mw, g); t += 1
                place(whole[0])
                if whole[0].kind == "T":
                    c = [it for it in ready if it.kind == "V" and free(it)]
                    if c: place(c[0]); t -= 1
            elif g >= 0:
                if mw: do_wait(mw, g); t = 1
                else:
                    cw = [it for it in ready if ok(it) and needs(it) and (not it.fixed or it.late <= g + 1)]
                    cw += [e[2] for e in heap[:8] if e[2].fixed and e[2].late == g + 1 and needs(e[2])]
                    cj = [it for it in ready if it.kind == "J" and free(it) and not it.fixed]
                    cs = [it for it in ready if it.kind == "S" and free(it) and not it.fixed]
                    if cw and (not cs or key(cw[0]) <= key(cs[0]) or cw[0].fixed): do_wait(needs(cw[0]), g); t = 1
                    elif cj and not [u for u in urgent if u.kind == "D"]: place(cj[0])
                    elif cs: place(cs[0])
                resv = sum(COST[it.kind] for it in ready if it.fixed and it.late == g)
                while True:
                    tt = max(t, 1); room = 3 - resv - tt
                    if room <= 0: break
                    cD = [it for it in ready if it.kind == "D" and free(it) and not it.fixed] if tt == 1 else []
                    cV = [it for it in ready if it.kind == "V" and free(it) and not it.fixed]
                    cE = [it for it in ready if it.kind == "E" and free(it) and not it.fixed] if (room >= 2 and not sm) else []
                    kD = key(cD[0])[0] if cD else 1e9; kV = key(cV[0])[0] if cV else 1e9; kE = key(cE[0])[0] if cE else 1e9
                    cand = None
                    if tt == 1:
                        if cD and (cD[0].dl <= g or (not tight) or cV or not cE): cand = cD[0]
                        elif cE and (tight and len(cV) < 4 and (not cV or cV[0].dl > g + 1) or kE <= kV + 8 or not cV): cand = cE[0]
                        elif cV: cand = cV[0]
                    elif cV and (tight or kV <= g + 2 or len(cV) > 6 and kV <= g + 30): cand = cV[0]
                    if cand is None:
                        cs = [it for it in ready if it.kind == "S" and free(it) and not it.fixed and it.n == 1 and key(it)[0] <= g - 1]
                        if cs: cand = cs[0]
                    if cand is None: break
                    place(cand)
            while True:
                pull(g)
                f = [it for it in ready if not it.fixed and (it.hard <= g or ((it.dl <= g - 1 or g < 0 and it.kind == "D" and it.dl < 12) and it.rdy <= g and it.kind != "Z" and dist_ok(it) <= 0 and (it.kind in "DVES") and (t < 5 or g < 0)))]
                if not f: f = [it for it in ready if it.fixed and it.hard <= g]
                if not f: break
                f2 = [it for it in f if dist_ok(it) <= 0]
                c = (f2 or f)[0]
                if not f2:
                    alt = [it for it in ready if it.kind in "VS" and free(it) and not it.fixed]
                    if alt: c = alt[0]
                if t >= 3 and c.kind != "Z": stats["forced"] += 1
                place(c)
            gapcost.append(max(16, 4 + 4 * t) if g >= 0 else 4 * t)
        assert not ready and not heap, (ready[:5], heap[:5])
        left = [it for it in self.items if it.gap is None]
        assert not left, left[:5]
        self.gapcost = gapcost[1:]
        if verbose:
            print(f"  {self.name}: mfma {n} est {sum(gapcost):.0f} ideal {16*n} {stats}")
            mk = list(marks) + [("end", n)]
            for (a, g0), (b, g1) in zip(mk, mk[1:]): print(f"     {a:8s} gaps {g0:5d}..{g1:5d} est {sum(self.gapcost[g0:g1]):7.0f} ideal {16*(g1-g0)}")
        for l in out: k(l)
        self.vm_out = vmq[ret["vm"]:]
        return out
```

```python
def classify(text):
    op = text.split()[0]
    if op in (".stamp", ".rt"): return "Z"
    if op.startswith(("buffer_", "global_")) or op == "s_barrier": return "M"
    if op.startswith("v_mfma"): return "M"
    if op.startswith("ds_"): return "D"
    if op.startswith(("v_exp", "v_rcp", "v_log", "v_rsq", "v_sqrt", "v_permlane")): return "E"
    if op.startswith("v_"): return "V"
    if "s_cbranch" in text: return "J"
    return "S"

class Item:
    def __init__(self, text, earliest=0, latest=None, prio=None, deps=(), cost=None, kind=None):
        self.text = text; self.kind = kind or classify(text)
        self.earliest = earliest; self.latest = latest
        self.prio = earliest if prio is None else prio
        self.deps = [d if isinstance(d, tuple) else (d, 0) for d in deps]
        self.pos = None
        self.n = sum(1 for l in text.split("\n") if not l.strip().endswith(":") and not l.startswith("."))

COST = {"Z": 0, "M": 3, "D": 1, "E": 2, "V": 1, "J": 2, "S": 1}
class Region:
    def __init__(self, mfmas, name=""):
        self.mfmas = mfmas; self.items = []; self.name = name
        self.fixed = {}; self.tail = {}
    def add(self, text, **kw):
        it = Item(text, **kw); it.seq = len(self.items); self.items.append(it); return it
    def chain(self, texts, earliest=0, prio=None, deps=(), spacing=0, latest=None):
        prev = None; out = []
        for t in texts:
            d = list(deps) if prev is None else [(prev, spacing)]
            prev = self.add(t, earliest=earliest, prio=prio, deps=d, latest=latest); out.append(prev)
        return out
    def fix(self, gap, text, end=False):
        it = Item(text); (self.tail if end else self.fixed).setdefault(gap, []).append(it); return it
    def emit(self, k, verbose=False):
        n = len(self.mfmas)
        pend = sorted(self.items, key=lambda it: (it.prio, it.seq))
        pos = 0; out = []; est = 0; full = 0
        def ready(it, g):
            if it.earliest > g: return False
            for d, sp in it.deps:
                if d.pos is None or pos - d.pos - 1 < sp: return False
            return True
        def put(it):
            nonlocal pos
            out.append(it.text); pos += it.n; it.pos = pos - 1
            if it in pend: pend.remove(it)
            if getattr(it, "glue", None) is not None: put(it.glue)
        def first_unplaced(it):
            for d, sp in it.deps:
                if d.pos is None: return first_unplaced(d)
            return it
        for g in range(n):
            out.append(self.mfmas[g]); pos += 1
            fx = list(self.fixed.get(g, [])); tl = self.tail.get(g, [])
            t = 0
            lim = 3 - sum(COST[i.kind] for i in tl)
            def place(it):
                nonlocal t
                if it.kind in "DVE": t = max(t, 1)
                if it.kind == "D" and t >= 2: t += 1
                put(it); t += COST[it.kind] + (it.n - 1 if it.kind == "S" else 0)
            fs = [i for i in fx if i.kind == "S"]; fo = [i for i in fx if i.kind != "S"]
            rd = lambda kinds: [it for it in pend if it.kind in kinds and ready(it, g)]
            done = False
            if not fx and not tl:
                c = rd("M")
                if c and not rd("J"): place(c[0]); done = True
            elif not tl and len(fx) == 1 and fx[0].kind == "S" and "lgkm" in fx[0].text:
                c = [it for it in rd("M") if it.earliest <= g - 2]
                if c: place(fx[0]); place(c[0]); done = True
            if not done:
                for i in fs: place(i)
                if t == 0 and not any(i.kind in "MJ" for i in fo) and lim > 0:
                    c = rd("J") if not fo else []
                    if c and lim >= 2: place(c[0])
                    else:
                        c = rd("S")
                        if c: place(c[0])
                for i in fo: place(i)
                while True:
                    tt = max(t, 1)
                    room = lim - tt
                    if room <= 0: break
                    c = rd("VES" if room >= 2 else "VS")
                    cv = [i for i in c if i.kind != "S"]
                    if cv:
                        cand = cv[0]
                        if room >= 2 and cand.kind == "V":
                            big = [i for i in cv[:10] if i.kind == "E" and i.prio <= cand.prio + 8]
                            if big: cand = big[0]
                        if room == 1 and tt == 2 and cand.prio > g + 3 and t == 2 and self._lastkind == "V": break
                    elif c and c[0].prio <= g - 2: cand = c[0]
                    else: break
                    self._lastkind = cand.kind
                    place(cand)
                    continue
            self._lastkind = None
            if g == n - 1 and self.tailnop and pend: out.append(f"s_nop {self.tailnop}"); pos += 1; t += self.tailnop + 1
            while True:
                forced = [it for it in pend if it.latest is not None and it.latest <= g]
                if forced: c = first_unplaced(forced[0])
                elif g == n - 1 and pend:
                    r2 = [it for it in pend if ready(it, 10**6)]
                    c = r2[0] if r2 else pend[0]
                else: break
                if not ready(c, max(g, c.earliest)):
                    alt = [it for it in pend if it is not c and it.kind in "VES" and ready(it, g) and it.prio <= g + 8]
                    if alt: place(alt[0])
                    else: out.append("s_nop 0"); pos += 1; t += 1
                    continue
                place(c)
            for i in tl: place(i)
            est += max(16, 4 + 4 * t) + (0.8 if t == 3 else 0)
        assert not pend
        if verbose: print(f"  region {self.name}: mfma {n} est cycles {est:.0f} (ideal {16*n})")
        for l in out: k(l)
    _lastkind = None
    tailnop = 0
```

```python
from common import *

def gen_ln():
    k = Kernel("ln_kernel", 256, 128, 0, 128, 128)
    k("s_cmp_ge_u32 s2, 256\ns_cbranch_scc1 ln_end")
    k("s_load_dwordx2 s[4:5], s[0:1], 0\ns_load_dwordx2 s[6:7], s[0:1], 48\ns_load_dwordx2 s[8:9], s[0:1], 96")
    k("v_lshrrev_b32 v1, 4, v0\ns_lshl_b32 s3, s2, 3\nv_add_u32 v1, s3, v1")
    k("v_and_b32 v2, 15, v0")
    k("v_mul_u32_u24 v3, 1280, v1\nv_lshlrev_b32 v4, 4, v2\nv_add_u32 v3, v3, v4")
    k("s_waitcnt lgkmcnt(0)")
    srd_off(k, 12, 4, None, 2621440); srd_off(k, 16, 6, None, 1280); srd_off(k, 20, 8, None, WS_SIZE)
    for i in range(5): k(f"buffer_load_dwordx4 {q('v',16+4*i)}, v3, s[12:15], 0 offen offset:{i*256}")
    for i in range(5): k(f"buffer_load_dwordx4 {q('v',36+4*i)}, v4, s[16:19], 0 offen offset:{i*256}")
    k("v_lshrrev_b32 v5, 6, v1\nv_mul_u32_u24 v5, 81920, v5")
    k("v_bfe_u32 v6, v1, 4, 2\nv_lshl_add_u32 v5, v6, 10, v5")
    k("v_and_b32 v6, 15, v1\nv_lshl_add_u32 v5, v6, 4, v5")
    k("v_lshrrev_b32 v6, 2, v2\nv_lshl_add_u32 v5, v6, 12, v5")
    k("v_and_b32 v6, 3, v2\nv_lshl_add_u32 v5, v6, 8, v5")
    for i in range(5): k(f"s_mov_b32 s{24+i}, {XNF + i*16384}")
    k(f"s_lshl_b32 s30, s2, 7\ns_add_u32 s30, s30, {FLAGS}\nv_mov_b32 v7, 0\nv_lshlrev_b32 v8, 2, v0\nv_lshlrev_b32 v9, 4, v0")
    k(f"v_mov_b32 v12, -1\nv_mov_b32 v13, -1\nv_mov_b32 v14, -1\nv_mov_b32 v15, -1\ns_mul_i32 s31, s2, 960\ns_add_u32 s31, s31, {GU}")
    k("v_cmp_gt_u32 vcc, 60, v0\ns_and_saveexec_b64 s[32:33], vcc\ns_cbranch_execz ln_nz")
    k("buffer_store_dwordx4 v[12:15], v9, s[20:23], s31 offen")
    k("v_cmp_gt_u32 vcc, 32, v0\ns_and_b64 exec, exec, vcc\nbuffer_store_dword v7, v8, s[20:23], s30 offen")
    k("ln_nz:\ns_mov_b64 exec, s[32:33]")
    k(f"s_mov_b32 s34, {fbits(1.0/640):#x}\ns_mov_b32 s35, {fbits(1e-5):#x}")
    k("s_waitcnt vmcnt(5)" if False else "s_waitcnt vmcnt(0)")
    F = 64
    for i in range(20):
        k(f"v_lshlrev_b32 v{F+2*i}, 16, v{16+i}\nv_and_b32 v{F+2*i+1}, 0xffff0000, v{16+i}")
    def red16(r):
        for st in (8, 4, 2, 1):
            k(f"s_nop 1\nv_add_f32_dpp v{r}, v{r}, v{r} row_ror:{st} row_mask:0xf bank_mask:0xf")
    k(f"v_pk_add_f32 v[8:9], v[{F}:{F+1}], v[{F+2}:{F+3}]\nv_pk_add_f32 v[10:11], v[{F+4}:{F+5}], v[{F+6}:{F+7}]")
    for i in range(4, 20):
        a = 8 + 2 * (i % 2)
        k(f"v_pk_add_f32 v[{a}:{a+1}], v[{a}:{a+1}], v[{F+2*i}:{F+2*i+1}]")
    k("v_pk_add_f32 v[8:9], v[8:9], v[10:11]\nv_add_f32 v8, v8, v9")
    red16(8)
    k("v_mul_f32 v8, s34, v8")
    k("v_sub_f32 v12, 0, v8\nv_sub_f32 v13, 0, v8\nv_mov_b32 v10, 0\nv_mov_b32 v11, 0\nv_mov_b32 v14, 0\nv_mov_b32 v15, 0")
    for i in range(20):
        a = 10 if i % 2 == 0 else 14
        t = 104 + 2 * (i % 4)
        k(f"v_pk_add_f32 v[{t}:{t+1}], v[{F+2*i}:{F+2*i+1}], v[12:13]\nv_pk_fma_f32 v[{a}:{a+1}], v[{t}:{t+1}], v[{t}:{t+1}], v[{a}:{a+1}]")
    k("v_pk_add_f32 v[10:11], v[10:11], v[14:15]\nv_add_f32 v10, v10, v11")
    red16(10)
    k("v_mul_f32 v10, s34, v10")
    round_bf16(k, 8, 8); round_bf16(k, 10, 10)
    k("v_add_f32 v10, s35, v10"); round_bf16(k, 10, 10)
    k("v_sqrt_f32 v10, v10\ns_nop 0"); round_bf16(k, 10, 10)
    k("v_rcp_f32 v10, v10\nv_sub_f32 v12, 0, v8\nv_sub_f32 v13, 0, v8\nv_mov_b32 v11, v10\nv_mov_b32 v14, 0\nv_mov_b32 v15, 0")
    k(f"v_mul_f32 v6, {fbits(CSC):#x}, v10\nv_mov_b32 v9, v10\nv_mov_b32 v7, v6")
    for i in range(20):
        f = F + 2 * i
        t = 104 + 2 * (i % 4); u = 112 + 2 * (i % 4)
        k(f"v_pk_add_f32 v[{f}:{f+1}], v[{f}:{f+1}], v[12:13]")
        k(f"v_cvt_pk_bf16_f32 v{16+i}, v{f}, v{f+1}")
        k(f"v_lshlrev_b32 v{f}, 16, v{16+i}\nv_and_b32 v{f+1}, 0xffff0000, v{16+i}")
        k(f"v_pk_mul_f32 v[{u}:{u+1}], v[{f}:{f+1}], v[6:7]")
        k(f"v_pk_mul_f32 v[{f}:{f+1}], v[{f}:{f+1}], v[10:11]")
        k(f"v_cvt_pk_bf16_f32 v{16+i}, v{u}, v{u+1}")
        k(f"v_cvt_pk_bf16_f32 v{u}, v{f}, v{f+1}")
        k(f"v_lshlrev_b32 v{f}, 16, v{u}\nv_and_b32 v{f+1}, 0xffff0000, v{u}")
        k(f"v_lshlrev_b32 v{t}, 16, v{36+i}\nv_and_b32 v{t+1}, 0xffff0000, v{36+i}")
        k(f"v_pk_fma_f32 v[14:15], v[{f}:{f+1}], v[{t}:{t+1}], v[14:15]")
        if i % 4 == 3: k(f"buffer_store_dwordx4 {q('v',16+i-3)}, v5, s[20:23], s{24+i//4} offen")
    k("v_add_f32 v14, v14, v15")
    red16(14)
    round_bf16(k, 14, 14)
    k("v_ashrrev_i32 v15, 31, v14\nv_or_b32 v15, 0x80000000, v15\nv_xor_b32 v14, v14, v15\nv_and_b32 v14, 0xffff0000, v14")
    k("v_sub_u32 v15, 2047, v1\nv_or_b32 v14, v14, v15\nv_lshlrev_b32 v12, 2, v1\nv_lshlrev_b32 v13, 3, v1")
    k(f"s_mov_b32 s30, {KEYS}\nv_cmp_eq_u32 vcc, 0, v2\ns_and_saveexec_b64 s[32:33], vcc")
    k(f"buffer_store_dword v14, v12, s[20:23], s30 offen\ns_mov_b32 s31, {STATS}\nbuffer_store_dwordx2 v[8:9], v13, s[20:23], s31 offen")
    k("ln_end:\ns_endpgm")
    return k

def lane_consts(k, l, o):
    pass

def tr_addr(k, dst, l, t, rbstride, qd):
    k(f"v_bfe_u32 v{t}, v{l}, 2, 3")
    k(f"v_lshlrev_b32 v{dst}, 7, v{t}")
    k(f"v_lshrrev_b32 v{t}, 1, v{t}\nv_xor_b32 v{t}, {qd}, v{t}\nv_lshl_add_u32 v{dst}, v{t}, 5, v{dst}")
    k(f"v_and_b32 v{t}, 3, v{l}\nv_lshl_add_u32 v{dst}, v{t}, 3, v{dst}")
    k(f"v_lshrrev_b32 v{t}, 5, v{l}\nv_mul_u32_u24 v{t}, {rbstride}, v{t}\nv_add_u32 v{dst}, v{dst}, v{t}")

def dma_chunk_tr(k, dst, l, t):
    k(f"v_lshrrev_b32 v{t}, 4, v{l}\nv_lshlrev_b32 v{t}, 1, v{t}")
    k(f"v_and_b32 v{dst}, 7, v{l}\nv_xor_b32 v{dst}, v{dst}, v{t}\nv_lshlrev_b32 v{dst}, 4, v{dst}")

def wrow(k, dst, l, t):
    k(f"v_lshrrev_b32 v{t}, 5, v{l}\nv_lshlrev_b32 v{t}, 3, v{t}\nv_bfe_u32 v{dst}, v{l}, 3, 2\nv_add_u32 v{dst}, v{dst}, v{t}")

def xnf_row_addr(k, dst, row, t):
    k(f"v_lshrrev_b32 v{dst}, 6, v{row}\nv_mul_u32_u24 v{dst}, 81920, v{dst}")
    k(f"v_bfe_u32 v{t}, v{row}, 4, 2\nv_lshl_add_u32 v{dst}, v{t}, 10, v{dst}")
    k(f"v_and_b32 v{t}, 15, v{row}\nv_lshl_add_u32 v{dst}, v{t}, 4, v{dst}")

def gen_ffn1():
    k = Kernel("ffn1_kernel", 240, 256, 16384, 96, 96)
    k("s_cmp_ge_u32 s2, 240\ns_cbranch_scc1 f1_end")
    k("s_load_dwordx4 s[4:7], s[0:1], 56\ns_load_dwordx2 s[8:9], s[0:1], 96")
    k("v_and_b32 v1, 63, v0\nv_lshrrev_b32 v2, 6, v0\ns_nop 0\nv_readfirstlane_b32 s3, v2")
    k(f"s_mul_hi_u32 s24, s2, {(2**32 + 23)//24}\ns_mul_i32 s25, s24, 24\ns_sub_u32 s25, s2, s25")
    k("s_waitcnt lgkmcnt(0)")
    srd_off(k, 12, 4, None, 1966080); srd_off(k, 16, 6, None, 1966080); srd_off(k, 20, 8, None, WS_SIZE)
    wrow(k, 4, 1, 3); k("v_mul_u32_u24 v4, 3072, v4"); dma_chunk_tr(k, 5, 1, 3); k("v_add_u32 v4, v4, v5\nv_add_u32 v5, 16*3072, v4")
    k("s_lshr_b32 s26, s3, 1\ns_lshl_b32 s26, s26, 5\ns_and_b32 s27, s3, 1\ns_lshl_b32 s27, s27, 2\ns_add_u32 s26, s26, s27")
    k("s_lshl_b32 s27, s24, 6\ns_add_u32 s26, s26, s27\ns_mul_i32 s26, s26, 3072\ns_lshl_b32 s27, s25, 7\ns_add_u32 s26, s26, s27")
    k("s_lshl_b32 s28, s3, 12")
    for ab in range(2):
        for mat in range(2):
            k(f"s_add_u32 m0, s28, {ab*2048 + mat*1024}\ns_nop 0\nbuffer_load_dwordx4 v{4+ab}, s[{12+4*mat}:{15+4*mat}], s26 offen lds")
    top2(k, 20, 32, 1)
    k(f"s_cmp_lg_u32 s2, 0\ns_cbranch_scc1 f1_np\nv_mov_b32 v8, s40\nv_mov_b32 v9, s41\nv_mov_b32 v10, {TOP}\nbuffer_store_dwordx2 v[8:9], v10, s[20:23], 0 offen\nf1_np:")
    k("s_and_b32 s40, s40, 0x7ff\ns_sub_u32 s40, 2047, s40\ns_and_b32 s41, s41, 0x7ff\ns_sub_u32 s41, 2047, s41")
    k("v_and_b32 v8, 1, v1\nv_mov_b32 v9, s40\nv_mov_b32 v10, s41\nv_cmp_eq_u32 vcc, 1, v8\ns_nop 1\nv_cndmask_b32 v9, v9, v10, vcc")
    xnf_row_addr(k, 10, 9, 11)
    k("v_lshrrev_b32 v11, 4, v1\nv_lshl_add_u32 v10, v11, 8, v10")
    k("v_bfe_u32 v11, v1, 1, 3\nv_mov_b32 v12, 0x7ffffff0")
    k("v_cmp_eq_u32 vcc, 0, v11\ns_nop 1\nv_cndmask_b32 v13, v12, v10, vcc\nv_cmp_eq_u32 vcc, 1, v11\ns_nop 1\nv_cndmask_b32 v14, v12, v10, vcc")
    k(f"s_lshl_b32 s29, s24, 13\ns_add_u32 s29, s29, {XNF}\ns_add_u32 s30, s29, 4096")
    for ks in range(2):
        for mat in range(2):
            k(f"buffer_load_dwordx4 {q('v',16+8*ks+4*mat)}, v{13+mat}, s[20:23], s{29+ks} offen")
    tr_addr(k, 6, 1, 3, 2048, "s3")
    k("s_waitcnt vmcnt(0)\ns_barrier")
    for ks in range(2):
        for mat in range(2):
            r = 32 + 8 * ks + 4 * mat
            k(f"ds_read_b64_tr_b16 v[{r}:{r+1}], v6 offset:{ks*8192 + mat*1024}\nds_read_b64_tr_b16 v[{r+2}:{r+3}], v6 offset:{ks*8192 + 4096 + mat*1024}")
    k("s_waitcnt lgkmcnt(0)")
    for i in range(4):
        k(f"{MF} v[48:51], {q('v',16+4*i)}, {q('v',32+4*i)}, {'0' if i == 0 else 'v[48:51]'}")
    k(f"s_mul_i32 s31, s24, 1536\ns_lshl_b32 s27, s25, 6\ns_add_u32 s31, s31, s27\ns_lshl_b32 s27, s3, 4\ns_add_u32 s31, s31, s27\ns_lshl_b32 s31, s31, 4\ns_add_u32 s31, s31, {GU}")
    k("v_lshlrev_b32 v8, 4, v1\nv_cmp_gt_u32 vcc, 16, v1\ns_and_saveexec_b64 s[32:33], vcc\ns_nop 7")
    k("buffer_store_dwordx4 v[48:51], v8, s[20:23], s31 offen")
    k("f1_end:\ns_endpgm")
    return k

def gen_ffn2():
    k = Kernel("ffn2_kernel", 240, 256, 8192 + 1024, 96, 96)
    k("s_cmp_ge_u32 s2, 240\ns_cbranch_scc1 f2_end")
    k("s_load_dwordx2 s[4:5], s[0:1], 72\ns_load_dwordx2 s[8:9], s[0:1], 96")
    k("v_and_b32 v1, 63, v0\nv_lshrrev_b32 v2, 6, v0\ns_nop 0\nv_readfirstlane_b32 s3, v2")
    k(f"s_mul_hi_u32 s24, s2, {(2**32 + 9)//10}\ns_mul_i32 s25, s24, 10\ns_sub_u32 s25, s2, s25")
    k(f"s_mov_b32 s90, {fbits(-LOG2E):#x}")
    k("s_waitcnt lgkmcnt(0)")
    srd_off(k, 12, 4, None, 1966080); srd_off(k, 20, 8, None, WS_SIZE)
    wrow(k, 4, 1, 3); k("v_mul_u32_u24 v4, 1280, v4"); dma_chunk_tr(k, 5, 1, 3); k("v_add_u32 v4, v4, v5\nv_add_u32 v5, 16*1280, v4")
    k("s_lshr_b32 s26, s3, 1\ns_lshl_b32 s26, s26, 5\ns_and_b32 s27, s3, 1\ns_lshl_b32 s27, s27, 2\ns_add_u32 s26, s26, s27")
    k("s_lshl_b32 s27, s24, 6\ns_add_u32 s26, s26, s27\ns_mul_i32 s26, s26, 1280\ns_lshl_b32 s27, s25, 7\ns_add_u32 s26, s26, s27")
    k("s_lshl_b32 s28, s3, 11")
    for ab in range(2):
        k(f"s_add_u32 m0, s28, {ab*1024}\ns_nop 0\nbuffer_load_dwordx4 v{4+ab}, s[12:15], s26 offen lds")
    k(f"v_lshlrev_b32 v8, 4, v1\ns_lshl_b32 s29, s24, 10\ns_add_u32 s29, s29, {GU}")
    for i in range(10):
        k(f"buffer_load_dwordx4 {q('v',16+4*i)}, v8, s[20:23], s29 offen\ns_add_u32 s29, s29, {1536*16}")
    tr_addr(k, 6, 1, 3, 1024, "s3")
    k("s_waitcnt vmcnt(0)")
    for i in range(1, 10):
        k(f"v_pk_add_f32 v[16:17], v[16:17], v[{16+4*i}:{17+4*i}]\nv_pk_add_f32 v[18:19], v[18:19], v[{18+4*i}:{19+4*i}]")
    for t in range(4): round_bf16(k, 16 + t, 16 + t)
    for t in range(2):
        silu(k, 16 + t, 16 + t, 20); round_bf16(k, 16 + t, 16 + t)
        k(f"v_mul_f32 v{16+t}, v{16+t}, v{18+t}")
    k("v_cvt_pk_bf16_f32 v16, v16, v17")
    k("s_lshl_b32 s30, s3, 8\ns_add_u32 s30, s30, 8192\nv_lshlrev_b32 v9, 1, v1\nv_add_u32 v9, s30, v9")
    k("ds_write_b16 v9, v16\nds_write_b16_d16_hi v9, v16 offset:128")
    k("v_and_b32 v10, 1, v1\nv_lshlrev_b32 v10, 7, v10\nv_lshrrev_b32 v11, 4, v1\nv_lshl_add_u32 v10, v11, 4, v10\nv_add_u32 v10, s30, v10")
    k("s_waitcnt lgkmcnt(0)\ns_barrier")
    for ks in range(2):
        k(f"ds_read_b128 {q('v',24+4*ks)}, v10 offset:{ks*64}")
        r = 32 + 4 * ks
        k(f"ds_read_b64_tr_b16 v[{r}:{r+1}], v6 offset:{ks*4096}\nds_read_b64_tr_b16 v[{r+2}:{r+3}], v6 offset:{ks*4096 + 2048}")
    k("s_waitcnt lgkmcnt(0)")
    k(f"{MF} v[48:51], v[24:27], v[32:35], 0\n{MF} v[48:51], v[28:31], v[36:39], v[48:51]")
    k(f"s_mul_i32 s31, s24, 1280\ns_lshl_b32 s27, s25, 6\ns_add_u32 s31, s31, s27\ns_lshl_b32 s27, s3, 4\ns_add_u32 s31, s31, s27\ns_lshl_b32 s31, s31, 2\ns_add_u32 s31, s31, {YP}")
    k("v_lshlrev_b32 v8, 2, v1\nv_cmp_gt_u32 vcc, 16, v1\ns_and_saveexec_b64 s[32:33], vcc\ns_nop 7")
    k("buffer_store_dword v48, v8, s[20:23], s31 offen\nbuffer_store_dword v49, v8, s[20:23], s31 offen offset:2560")
    k("f2_end:\ns_endpgm")
    return k

def gen_fin():
    k = Kernel("fin_kernel", 640, 256, 0, 128, 128)
    k("s_cmp_ge_u32 s2, 640\ns_cbranch_scc1 fin_end")
    k("s_load_dwordx2 s[4:5], s[0:1], 0\ns_load_dwordx2 s[6:7], s[0:1], 80\ns_load_dwordx2 s[8:9], s[0:1], 96")
    k("v_and_b32 v1, 63, v0\nv_lshrrev_b32 v2, 6, v0\nv_lshlrev_b32 v3, 4, v0\nv_readfirstlane_b32 s3, v2")
    k(f"s_mul_hi_u32 s24, s2, {(2**32 + 19)//20}\ns_mul_i32 s25, s24, 20\ns_sub_u32 s25, s2, s25")
    k(f"s_lshl_b32 s26, s2, 12\ns_add_u32 s27, s26, {PART}")
    k("v_bfe_u32 v4, v1, 4, 1\nv_bfe_u32 v5, v1, 5, 1\nv_lshl_add_u32 v4, v4, 1, v5")
    k("v_and_b32 v5, 15, v1\ns_lshl_b32 s28, s24, 6\ns_lshl_b32 s29, s3, 4\ns_add_u32 s28, s28, s29\nv_add_u32 v7, s28, v5")
    k("v_mul_u32_u24 v8, 1280, v7\nv_lshl_add_u32 v8, v4, 4, v8\ns_lshl_b32 s29, s25, 6\nv_lshlrev_b32 v6, 3, v7")
    k("s_waitcnt lgkmcnt(0)")
    k(f"s_add_u32 s10, s8, {TOP}\ns_addc_u32 s11, s9, 0\ns_load_dwordx2 s[40:41], s[10:11], 0")
    srd_off(k, 20, 8, None, WS_SIZE)
    for g in range(8):
        k(f"buffer_load_dwordx4 {q('v',16+4*g)}, v3, s[20:23], s27 offen\ns_add_u32 s27, s27, 2621440")
    srd_off(k, 12, 4, None, 2621440); srd_off(k, 16, 6, None, 2621440)
    k(f"s_mov_b32 s26, {STATS}\nbuffer_load_dwordx2 v[48:49], v6, s[20:23], s26 offen")
    k("buffer_load_dwordx4 v[52:55], v8, s[12:15], s29 offen")
    k(f"s_mov_b32 s90, {fbits(-LOG2E):#x}")
    for i in range(8): k(f"v_mov_b32 v{56+i}, 0")
    k("s_waitcnt lgkmcnt(0)")
    k("s_and_b32 s42, s40, 0x7ff\ns_sub_u32 s42, 2047, s42\ns_and_b32 s43, s41, 0x7ff\ns_sub_u32 s43, 2047, s43")
    k("v_cmp_eq_u32 s[44:45], s42, v7\nv_cmp_eq_u32 s[46:47], s43, v7\ns_or_b64 s[48:49], s[44:45], s[46:47]")
    k("s_cbranch_scc1 fin_routed\nfin_back:")
    S = 64
    for g in range(8):
        k(f"s_waitcnt vmcnt({9-g})")
        for i in range(4):
            if g == 0:
                k(f"v_lshlrev_b32 v{S+2*i}, 16, v{16+i}\nv_and_b32 v{S+2*i+1}, 0xffff0000, v{16+i}")
            else:
                t = 72 + 2 * i
                k(f"v_lshlrev_b32 v{t}, 16, v{16+4*g+i}\nv_and_b32 v{t+1}, 0xffff0000, v{16+4*g+i}\nv_pk_add_f32 v[{S+2*i}:{S+2*i+1}], v[{S+2*i}:{S+2*i+1}], v[{t}:{t+1}]")
    k("s_nop 1")
    for r in range(4): k(f"v_permlane16_swap_b32 v{S+r}, v{S+4+r}")
    k("s_waitcnt vmcnt(0)")
    def rnd2(a, b): k(f"v_cvt_pk_bf16_f32 v88, v{a}, v{b}\nv_lshlrev_b32 v{a}, 16, v88\nv_and_b32 v{b}, 0xffff0000, v88")
    for i in range(4):
        a, b = 80, 81
        k(f"v_lshlrev_b32 v82, 16, v{52+i}\nv_and_b32 v83, 0xffff0000, v{52+i}")
        k(f"v_sub_f32 v{a}, v82, v48\nv_sub_f32 v{b}, v83, v48"); rnd2(a, b)
        k(f"v_mul_f32 v{a}, v{a}, v49\nv_mul_f32 v{b}, v{b}, v49"); rnd2(a, b)
        k(f"v_add_f32 v{a}, v{a}, v{56+2*i}\nv_add_f32 v{b}, v{b}, v{57+2*i}"); rnd2(a, b)
        k(f"v_mul_f32 v89, s90, v{a}\nv_mul_f32 v90, s90, v{b}\nv_exp_f32 v89, v89\nv_exp_f32 v90, v90\ns_nop 0\nv_add_f32 v89, 1.0, v89\nv_add_f32 v90, 1.0, v90")
        k(f"v_rcp_f32 v89, v89\nv_rcp_f32 v90, v90\ns_nop 0\nv_mul_f32 v{a}, v{a}, v89\nv_mul_f32 v{b}, v{b}, v90"); rnd2(a, b)
        rnd2(S + 2 * i, S + 2 * i + 1)
        k(f"v_mul_f32 v{a}, v{a}, v{S+2*i}\nv_mul_f32 v{b}, v{b}, v{S+2*i+1}"); rnd2(a, b)
        k(f"v_add_f32 v{a}, v{a}, v82\nv_add_f32 v{b}, v{b}, v83\nv_cvt_pk_bf16_f32 v{92+i}, v{a}, v{b}")
    k("buffer_store_dwordx4 v[92:95], v8, s[16:19], s29 offen")
    k("fin_end:\ns_endpgm")
    k("fin_routed:")
    k("v_and_b32 v9, 1, v5\nv_mul_u32_u24 v9, 2560, v9\nv_lshrrev_b32 v10, 1, v5\nv_mul_u32_u24 v10, 5120, v10\nv_add_u32 v9, v9, v10\nv_lshl_add_u32 v9, v4, 5, v9")
    k(f"s_lshl_b32 s30, s25, 7\ns_add_u32 s30, s30, {YP}")
    for c in range(3):
        k(f"buffer_load_dwordx4 {q('v',96+8*c)}, v9, s[20:23], s30 offen\nbuffer_load_dwordx4 {q('v',100+8*c)}, v9, s[20:23], s30 offen offset:16\ns_add_u32 s30, s30, {8*5120}")
    k("v_mov_b32 v10, s40\nv_mov_b32 v11, s41\nv_cndmask_b32 v10, v10, v11, s[46:47]")
    k("v_and_b32 v10, 0xffff0000, v10\nv_ashrrev_i32 v11, 31, v10\nv_not_b32 v11, v11\nv_or_b32 v11, 0x80000000, v11\nv_xor_b32 v10, v10, v11\nv_and_b32 v10, 0xffff0000, v10")
    k("v_mul_f32 v10, s90, v10\nv_exp_f32 v10, v10\ns_nop 0\nv_add_f32 v10, 1.0, v10\nv_rcp_f32 v10, v10\ns_nop 0")
    round_bf16(k, 10, 10)
    k("v_and_b32 v11, 1, v5\nv_cmp_eq_u32 vcc, 1, v11\ns_xor_b64 s[50:51], vcc, s[46:47]")
    k("s_waitcnt vmcnt(0)")
    for e in range(8):
        k(f"v_add_f32 v{96+e}, v{96+e}, v{104+e}\nv_add_f32 v{96+e}, v{96+e}, v{112+e}")
    for st in (8, 4, 2):
        k("s_nop 1")
        for e in range(8): k(f"v_add_f32_dpp v{96+e}, v{96+e}, v{96+e} row_ror:{st} row_mask:0xf bank_mask:0xf")
    k("s_nop 1")
    for e in range(8): k(f"v_mov_b32_dpp v{104+e}, v{96+e} quad_perm:[1,0,3,2] row_mask:0xf bank_mask:0xf")
    for e in range(8):
        k(f"v_cndmask_b32 v{96+e}, v{96+e}, v{104+e}, s[50:51]")
        round_bf16(k, 96 + e, 96 + e); k(f"v_mul_f32 v{96+e}, v{96+e}, v10"); round_bf16(k, 96 + e, 96 + e)
        k(f"v_cndmask_b32 v{56+e}, v{56+e}, v{96+e}, s[48:49]")
    k("s_branch fin_back")
    return k
```

```python
import sys
sys.path.insert(0, "gen")
from common import *
import hazard

def finish(k, takes=((),)):
    drop = [x for x in OPT.get("drop", "").split(",") if x]
    if drop:
        import re
        k.lines = [l for l in k.lines if not any(re.search(r"@issue " + d, l) for d in drop)]
    if OPT.get("kill"):
        import re
        a = k.lines.index("at_loop:"); b = k.lines.index("tail_code:")
        k.lines = [l for i, l in enumerate(k.lines) if not (a < i < b and re.search(OPT["kill"], l))]
    if OPT.get("dot"):
        import re
        a = k.lines.index("at_loop:"); b = k.lines.index("tail_code:")
        out = []; n = 0
        for i, l in enumerate(k.lines):
            if a < i < b and re.search(r"v_add_f32 v2[4-7],", l):
                n += 1
                if n % 2: out.append(re.sub(r"v_add_f32 (v\d+), .*", r"v_dot2c_f32_bf16 \1, v59, v59", l))
                continue
            out.append(l)
        k.lines = out
    lines, errs = hazard.resolve_vm(k.lines)
    k.lines = lines
    for tk in takes:
        tr = hazard.trace(lines, loops=3, take=tk)
        errs += hazard.check(tr, k.name)
    seen = set()
    for e in errs:
        if "buffer_load_dword a22" in e or "buffer_load_dword a21" in e or "global_load_dword a220" in e or "load_dword a252" in e: continue
        if e not in seen: print("HAZARD", e); seen.add(e)
    print(f"{k.name}: {len(lines)} lines, {len(seen)} hazards")
    if seen and "--force" not in sys.argv: raise SystemExit("hazards found")
    open("annot.txt", "w").write("\n".join(lines))
    k.lines = [l.split(" ; @")[0] for l in lines]
    return k

def add_stamps(k, idx):
    out = []
    first = True
    endlab = None
    for i, l in enumerate(k.lines):
        out.append(l)
        if first and "s_cbranch_scc1" in l:
            endlab = l.split()[-1] + ":"
            out += ["    s_memrealtime s[96:97]", "    s_memtime s[98:99]", "    s_mov_b32 s100, s2"]; first = False
    nst = 0
    o2 = []
    for l in out:
        if l.strip().startswith(".stamp"):
            if nst == 0: o2 += ["    s_mov_b32 s94, 0", "    s_memtime s[90:91]"]
            else: o2 += ["    s_mov_b32 s95, m0", "    s_mov_b32 m0, s94", "    v_writelane_b32 v0, s90, m0", "    s_add_u32 s94, s94, 1", "    s_mov_b32 m0, s95", "    s_memtime s[90:91]"]
            nst += 1
        elif l.strip().startswith(".rt"): o2.append("    s_memrealtime s[82:83]")
        else: o2.append(l)
    out = o2
    if OPT.get("rtloop"):
        la, lb = OPT["rtloop"].split(",")
        ia = max(i for i, l in enumerate(out[:out.index(la + ":")]) if not l.strip().startswith(".")) + 1
        out.insert(ia, "    s_memrealtime s[90:91]"); out.insert(out.index(lb + ":") + 1, "    s_memrealtime s[94:95]")
    j = out.index(endlab)
    st = f"""s_mov_b64 exec, -1
s_waitcnt vmcnt(0) lgkmcnt(0)
s_load_dwordx2 s[4:5], s[0:1], 96
s_memrealtime s[6:7]
s_memtime s[8:9]
s_waitcnt lgkmcnt(0)
s_sub_u32 s8, s8, s98
s_mov_b32 s12, s4
s_and_b32 s13, s5, 0xffff
s_mov_b32 s14, {WS_SIZE}
s_mov_b32 s15, 0x00020000
s_lshl_b32 s100, s100, 4
s_add_u32 s100, s100, {STAMP + idx*0x10000}
v_mov_b32 v4, s96
v_mov_b32 v5, s6
v_mov_b32 v6, s8
v_mov_b32 v7, s82
v_mov_b32 v8, 0
buffer_store_dwordx4 v[4:7], v8, s[12:15], s100 offen""".split("\n")
    if OPT.get("rtloop"): st[st.index("v_mov_b32 v7, s82")] = "s_sub_u32 s94, s94, s90\n    v_mov_b32 v7, s94"
    if nst:
        st += ["s_mov_b32 m0, s94", "v_writelane_b32 v0, s90, m0", "s_add_u32 m0, s94, 1", "s_nop 3", "v_writelane_b32 v0, s98, m0", "v_subrev_u32 v0, s98, v0",
               "v_mbcnt_lo_u32_b32 v9, -1, 0", "v_mbcnt_hi_u32_b32 v9, -1, v9", "v_lshlrev_b32 v9, 2, v9",
               f"s_sub_u32 s100, s100, {STAMP + idx*0x10000}", "s_lshl_b32 s100, s100, 4", f"s_add_u32 s100, s100, {STAMP + 0x100000 + idx*0x10000}",
               f"s_cmp_eq_u32 s3, {OPT.get('tw', 0)}", "s_cselect_b32 s100, s100, 0x70000000", "buffer_store_dword v0, v9, s[12:15], s100 offen"]
    if OPT.get("dbgout"):
        st += ["s_load_dwordx2 s[16:17], s[0:1], 88", "s_waitcnt lgkmcnt(0)", "s_and_b32 s17, s17, 0xffff", "s_mov_b32 s18, 64", "s_mov_b32 s19, 0x00020000",
               "s_sub_u32 s6, s6, s96", "v_mov_b32 v4, s6", "v_mov_b32 v5, s8", "s_lshl_b32 s20, s2, 3", "buffer_store_dwordx2 v[4:5], v8, s[16:19], s20 offen"]
    out[j:j] = ["    " + x for x in st]
    k.lines = out; k.sgprs = 102
    return k

def page_stubs(k):
    import subprocess, re
    NP = int(OPT.get("npage", 17))
    iw = [i for i, l in enumerate(k.lines) if l.strip() == ".warm"][0]
    warm = ["    s_mov_b64 exec, 0"] + [x for w in range(3) for x in (f"    s_cmp_eq_u32 s3, {w}", f"    s_cbranch_scc1 pg_{w}")] + ["    s_branch pg_3", "pg_back:", "    s_mov_b64 exec, -1"]
    if not NP: warm = []
    k.lines[iw:iw + 1] = warm
    if not NP: return
    save = k.lines
    k.lines = save + [f"pg_{w}:" for w in range(4)]
    open("pg.s", "w").write(build_file([k])); k.lines = save
    r = subprocess.run(["clang", "-x", "assembler", "-target", "amdgcn-amd-amdhsa", "-mcpu=gfx950", "-c", "pg.s", "-o", "pg.o"], capture_output=True, text=True)
    assert r.returncode == 0, r.stderr
    d = subprocess.run(["llvm-objdump", "-d", "--mcpu=gfx950", "pg.o"], capture_output=True, text=True).stdout.split("\n")
    i0 = [i for i, l in enumerate(d) if l.endswith("<page0>:")][0]
    sizes = [4 * len(l.split("//")[1].split(":")[1].split("<")[0].split()) for l in d[i0:] if "//" in l]
    h = k.lines.index("page0:"); out = k.lines[:h + 1]; off = 0; n = 0; page = 0
    ins = [l for l in k.lines[h + 1:]]
    for j, l in enumerate(ins):
        t = l.strip()
        if page < NP and off >= 4096 * page and not t.endswith(":"):
            prev = out[-1].strip()
            if prev.startswith(("v_mfma", "v_smfmac")) or off - 4096 * page >= 40 or page == 0:
                assert off - 4096 * page <= 60
                out += [f"pg_{page}:", f"    s_cbranch_execz {'pg_%d' % (page + 4) if page + 4 < NP else 'pg_back'}"]; off += 4; page += 1
        out.append(l)
        if t and not t.endswith(":") and not t.startswith("."): off += sizes[n]; n += 1
    assert page == NP
    k.lines = out

def build(path, stamps=False):
    if OPT.get("gen", "20") == "20":
        from mk20 import gen_main
        ev = tuple(f"ev_i{b}" for b in range(16)) + tuple(f"ev_s{b}" for b in range(16))
        mk = finish(gen_main(), takes=((), ("spin_o0", "spin_o3", "spin_ln", "spin_rec", "spin_gu", "routed_a", "routed", "spin_y", "rare"), ("rare", "rare_p2", "ev_loop", "ev_own", "ev_issued", "ev_acc", "ev_summed", "ev_f0"), ("routed_a", "routed", "ev_issued", "ev_acc", "ev_summed"), ("ev_s1", "ev_s2", "ev_summed", "ev_issued"),
                                       ("rare", "rare_p2", "rare_loop") + tuple(f"rare_d{h}" for h in range(31)) + ev, ("ev_f0", "ev_f1", "ev_acc")))
    else:
      from mk13 import gen_main
      mk = finish(gen_main(), takes=((), ("spin_o0", "spin_o3", "spin_ln", "spin_rec", "spin_gu", "routed_a", "routed", "spin_y",  "rare_p", "rare_a", "rare_b", "rare_e"), ("ev_r0", "ev_r1", "ev_iss"), ("ev_r0", "ev_r1", "ev_r2", "ev_loop", "ev_sel"), ("routed_a", "spin_y_ret", "routed", "own_odd"), ("own_share_ret",)))
    ks = [mk]
    if OPT.get("big"):
        out = []; n = 0
        def bigd():
            nonlocal n
            n += 1
            return ["    s_mul_i32 s94, s94, 1103515245", "    s_add_u32 s94, s94, 12345", "    s_bfe_u32 s95, s94, 0x60012", "    s_cmp_lg_u32 s95, 0", f"    s_cbranch_scc1 big_{n}",
                    "    s_bfe_u32 s95, s94, 0x4000c", f"bigl_{n}:", "    s_sleep 127", "    s_sub_u32 s95, s95, 1", f"    s_cbranch_scc0 bigl_{n}", f"big_{n}:"]
        started = False
        for l in mk.lines:
            t = l.strip()
            if started and (t in ("at_switch:", "post_code:", "tail_code:", "head_code:", "own_share_ret:") or t == "s_barrier"): out += bigd()
            out.append(l)
            if "v_readfirstlane_b32 s3," in t and not started:
                out += ["    s_memrealtime s[94:95]", "    s_waitcnt lgkmcnt(0)", "    s_lshl_b32 s95, s2, 2", "    s_add_u32 s95, s95, s3", f"    s_mul_i32 s95, s95, {2654435761 % 2**31}", "    s_add_u32 s94, s94, s95"] + bigd() + bigd(); started = True
        mk.lines = out
    if OPT.get("jit"):
        seed = int(OPT["jit"]); out = []; n = 0
        def delay():
            nonlocal n
            n += 1
            return ["    s_mul_i32 s94, s94, 1103515245", "    s_add_u32 s94, s94, 12345", f"    s_bfe_u32 s95, s94, 0x30010", "    s_cmp_lg_u32 s95, 0", f"    s_cbranch_scc1 jit_{n}", "    s_sleep 40", f"jit_{n}:"]
        started = False
        for l in mk.lines:
            t = l.strip()
            if started and (t == "s_barrier" or t.startswith("buffer_store_dword ")): out += delay()
            out.append(l)
            if "v_readfirstlane_b32 s3," in t and not started:
                out += ["    s_nop 4", "    s_lshl_b32 s94, s2, 2", "    s_add_u32 s94, s94, s3", f"    s_mul_i32 s94, s94, {2654435761 % 2**31}", f"    s_add_u32 s94, s94, {seed * 7919}"]; started = True
            elif started and t == "s_barrier": out += delay()
        mk.lines = out
    for i, k in enumerate(ks):
        if stamps: add_stamps(k, i)
        k.lines = [l for l in k.lines if not l.strip().startswith((".stamp", ".rt"))]
    if any(l.strip() == ".warm" for l in mk.lines): page_stubs(mk)
    open(path, "w").write(build_file(ks))

if __name__ == "__main__":
    out = sys.argv[1] if len(sys.argv) > 1 else f"/code/{NAME}.s"
    for a in sys.argv[2:]:
        if "=" in a:
            kk, vv = a.split("=", 1); OPT[kk] = vv.replace("+", " ")
    build(out, stamps="--stamps" in sys.argv)
```

```python
import sys
sys.path.insert(0, "gen")
from common import *
import hazard

def finish(k, takes=((),)):
    drop = [x for x in OPT.get("drop", "").split(",") if x]
    if drop:
        import re
        k.lines = [l for l in k.lines if not any(re.search(r"@issue " + d, l) for d in drop)]
    if OPT.get("kill"):
        import re
        a = k.lines.index("at_loop:"); b = k.lines.index("tail_code:")
        k.lines = [l for i, l in enumerate(k.lines) if not (a < i < b and re.search(OPT["kill"], l))]
    if OPT.get("dot"):
        import re
        a = k.lines.index("at_loop:"); b = k.lines.index("tail_code:")
        out = []; n = 0
        for i, l in enumerate(k.lines):
            if a < i < b and re.search(r"v_add_f32 v2[4-7],", l):
                n += 1
                if n % 2: out.append(re.sub(r"v_add_f32 (v\d+), .*", r"v_dot2c_f32_bf16 \1, v59, v59", l))
                continue
            out.append(l)
        k.lines = out
    lines, errs = hazard.resolve_vm(k.lines)
    k.lines = lines
    for tk in takes:
        tr = hazard.trace(lines, loops=3, take=tk)
        errs += hazard.check(tr, k.name)
    seen = set()
    for e in errs:
        if "buffer_load_dword a22" in e or "buffer_load_dword a21" in e or "global_load_dword a220" in e or "load_dword a25" in e: continue
        if e not in seen: print("HAZARD", e); seen.add(e)
    print(f"{k.name}: {len(lines)} lines, {len(seen)} hazards")
    if seen and "--force" not in sys.argv: raise SystemExit("hazards found")
    if int(OPT.get("m0k", 1)):
        import re as _r
        cur = None
        for i in range(lines.index("head_code:"), lines.index("post_code:")):
            t = lines[i].strip(); m = _r.match(r"s_add_u32 m0, (s\d+), (\d+)$", t)
            if m:
                if cur and cur[0] == m.group(1) and abs(int(m.group(2)) - cur[1]) < 32768: lines[i] = f"    s_addk_i32 m0, {int(m.group(2)) - cur[1]}"
                cur = (m.group(1), int(m.group(2)))
            elif cur and _r.match(r"(s_\w+|v_readfirstlane_b32|v_cmp\w+) (m0|" + cur[0] + r"|s\[)", t) and not t.startswith("s_cmp"): cur = None
    g = 0; polls = []
    import re as _re
    for l in lines:
        t = l.strip()
        if t == "post_code:": break
        if t.startswith(("v_mfma", "v_smf")): g += 1
        if "@nowait" in t: polls.append([g, 99, 0])
        m = _re.search(r"lgkmcnt\((\d+)\)", t)
        if m:
            for p_ in polls:
                if g - p_[0] <= 50 and int(m.group(1)) < p_[1]: p_[1] = int(m.group(1)); p_[2] = g - p_[0]
    print("   polls (gap, min lgkmcnt within 50 gaps, after)", polls)
    open("annot.txt", "w").write("\n".join(lines))
    k.lines = [l.split(" ; @")[0] for l in lines]
    return k

def add_stamps(k, idx):
    out = []
    first = True
    endlab = None
    for i, l in enumerate(k.lines):
        out.append(l)
        if first and "s_cbranch_scc1" in l:
            endlab = l.split()[-1] + ":"
            out += ["    s_memrealtime s[96:97]", "    s_memtime s[98:99]", "    s_mov_b32 s100, s2"]; first = False
    nst = 0
    o2 = []
    for l in out:
        if l.strip().startswith(".stamp"):
            if nst == 0: o2 += ["    s_mov_b32 s94, 0", "    s_memtime s[90:91]"]
            else: o2 += ["    s_mov_b32 s95, m0", "    s_mov_b32 m0, s94", "    v_writelane_b32 v0, s90, m0", "    s_add_u32 s94, s94, 1", "    s_mov_b32 m0, s95", "    s_memtime s[90:91]"]
            nst += 1
        elif l.strip().startswith(".rt"): o2.append("    s_memrealtime s[82:83]")
        else: o2.append(l)
    out = o2
    if OPT.get("rtloop"):
        la, lb = OPT["rtloop"].split(",")
        ia = max(i for i, l in enumerate(out[:out.index(la + ":")]) if not l.strip().startswith(".")) + 1
        out.insert(ia, "    s_memrealtime s[90:91]"); out.insert(out.index(lb + ":") + 1, "    s_memrealtime s[94:95]")
    j = out.index(endlab)
    st = f"""s_mov_b64 exec, -1
s_waitcnt vmcnt(0) lgkmcnt(0)
s_load_dwordx2 s[4:5], s[0:1], 96
s_memrealtime s[6:7]
s_memtime s[8:9]
s_waitcnt lgkmcnt(0)
s_sub_u32 s8, s8, s98
s_mov_b32 s12, s4
s_and_b32 s13, s5, 0xffff
s_mov_b32 s14, {WS_SIZE}
s_mov_b32 s15, 0x00020000
{'s_lshl2_add_u32 s100, s100, s3' if OPT.get('allw') else 's_nop 0'}
s_lshl_b32 s100, s100, 4
s_add_u32 s100, s100, {STAMP + idx*0x10000}
v_mov_b32 v4, s96
v_mov_b32 v5, s6
v_mov_b32 v6, s8
v_mov_b32 v7, s82
v_mov_b32 v8, 0
buffer_store_dwordx4 v[4:7], v8, s[12:15], s100 offen""".split("\n")
    if OPT.get("rtloop"): st[st.index("v_mov_b32 v7, s82")] = "s_sub_u32 s94, s94, s90\n    v_mov_b32 v7, s94"
    if nst:
        st += ["s_mov_b32 m0, s94", "v_writelane_b32 v0, s90, m0", "s_add_u32 m0, s94, 1", "s_nop 3", "v_writelane_b32 v0, s98, m0", "v_subrev_u32 v0, s98, v0",
               "v_mbcnt_lo_u32_b32 v9, -1, 0", "v_mbcnt_hi_u32_b32 v9, -1, v9", "v_lshlrev_b32 v9, 2, v9",
               f"s_sub_u32 s100, s100, {STAMP + idx*0x10000}", "s_lshl_b32 s100, s100, 4", f"s_add_u32 s100, s100, {STAMP + 0x100000 + idx*0x10000}",
               f"s_cmp_eq_u32 s3, {'s3' if OPT.get('allw') else OPT.get('tw', 0)}", "s_cselect_b32 s100, s100, 0x70000000", "buffer_store_dword v0, v9, s[12:15], s100 offen"]
    if OPT.get("dbgout"):
        st += ["s_load_dwordx2 s[16:17], s[0:1], 88", "s_waitcnt lgkmcnt(0)", "s_and_b32 s17, s17, 0xffff", "s_mov_b32 s18, 64", "s_mov_b32 s19, 0x00020000",
               "s_and_b32 s6, s6, 0xffff", "s_and_b32 s8, s82, 0xffff", "s_and_b32 s9, s96, 0x3fff", "s_mul_i32 s9, s9, 100000", "s_add_u32 s8, s8, s9", "v_mov_b32 v4, s8", "v_mov_b32 v5, s6", "s_lshl_b32 s20, s2, 3", "buffer_store_dwordx2 v[4:5], v8, s[16:19], s20 offen"]
    out[j:j] = ["    " + x for x in st]
    k.lines = out; k.sgprs = 102
    return k

def page_stubs(k):
    import subprocess, re
    NP = int(OPT.get("npage", 17))
    iw = [i for i, l in enumerate(k.lines) if l.strip() == ".warm"][0]
    NC = 2 if OPT.get("gen", "20") == "20" and OPT.get("lnx", "0") == "0" and OPT.get("wlate", "0") == "0" else 4
    warm = ["    s_mov_b64 exec, 0"] + [x for w in range(NC - 1) for x in (f"    s_cmp_eq_u32 s3, {w + 4 - NC}", f"    s_cbranch_scc1 pg_{w}")] + [f"    s_branch pg_{NC - 1}", "pg_back:", "    s_mov_b64 exec, -1"]
    iL = [i for i, l in enumerate(k.lines) if l.strip() == ".warmL"]
    if iL:
        NC = 4
        warm = ["    s_mov_b64 exec, 0", "    s_cmp_eq_u32 s3, 2", "    s_cbranch_scc1 pg_0", "    s_branch pg_1", "pg_back:", "    s_mov_b64 exec, -1"]
        k.lines[iL[0]:iL[0] + 1] = ["    s_mov_b64 exec, 0", "    s_cmp_eq_u32 s3, 0", "    s_cbranch_scc1 pg_2", "    s_branch pg_3", "pg_backL:", "    s_mov_b64 exec, -1"]
        iw = [i for i, l in enumerate(k.lines) if l.strip() == ".warm"][0]
    if not NP: warm = []
    k.lines[iw:iw + 1] = warm
    if not NP: return
    save = k.lines
    W2 = any(l.strip() == "pg_back2:" for l in save); N1 = NP - 1 if W2 else NP
    k.lines = save + [f"pg_{w}:" for w in range(4)] + ["pg_last:"]
    open("pg" + OPT.get("tmp", "") + ".s", "w").write(build_file([k])); k.lines = save
    r = subprocess.run(["clang", "-x", "assembler", "-target", "amdgcn-amd-amdhsa", "-mcpu=gfx950", "-c", "pg" + OPT.get("tmp", "") + ".s", "-o", "pg" + OPT.get("tmp", "") + ".o"], capture_output=True, text=True)
    assert r.returncode == 0, r.stderr
    d = subprocess.run(["llvm-objdump", "-d", "--mcpu=gfx950", "pg" + OPT.get("tmp", "") + ".o"], capture_output=True, text=True).stdout.split("\n")
    i0 = [i for i, l in enumerate(d) if l.endswith("<page0>:")][0]
    sizes = [4 * len(l.split("//")[1].split(":")[1].split("<")[0].split()) for l in d[i0:] if "//" in l]
    h = k.lines.index("page0:"); out = k.lines[:h + 1]; off = int(OPT.get("pg0", 128)) if OPT.get("gen", "20") == "20" else 0; n = 0; page = 0; masked = False
    ins = [l for l in k.lines[h + 1:]]
    for j, l in enumerate(ins):
        t = l.strip()
        if out[-1].strip().startswith(("s_mov_b64 exec,", "s_cselect_b64 exec")): masked = not out[-1].strip().endswith("-1")
        if page < NP and off >= 4096 * page and not t.endswith(":") and not masked:
            prev = out[-1].strip()
            if prev.startswith(("v_mfma", "v_smfmac")) or off - 4096 * page >= 40 or page == 0:
                assert off - 4096 * page <= 60 or page == 0
                if page == N1: out += ["pg_last:", "    s_cbranch_execz pg_back2"]
                else: out += [f"pg_{page}:", f"    s_cbranch_execz {'pg_%d' % (page + NC) if page + NC < N1 else ('pg_backL' if iL and page % 4 >= 2 else 'pg_back')}"]
                off += 4; page += 1
        out.append(l)
        if t and not t.endswith(":") and not t.startswith("."): off += sizes[n]; n += 1
    assert page == NP
    k.lines = out

def build(path, stamps=False):
    if OPT.get("gen", "20").startswith("20"):
        gen_main = __import__("mk" + OPT.get("gen", "20")).gen_main
        mk = finish(gen_main(), takes=((), ("spin_o0", "spin_o3", "spin_ln", "spin_rec", "spin_gu", "spin_y", "rare"), ("rare", "rare_p2", "ev_st"),
                                       tuple(f"ev_d{i}" for i in range(12)) + ("ev_w0",), tuple(f"ev_w{i}" for i in range(12)) + ("ev_n0",), tuple(f"ev_i{i}" for i in range(12)) + ("ev_w0", "ev_n0", "ev_l1"), tuple(f"ev_l{i}" for i in range(12)), ("ev_done", "no_ln", "no_lx", "no_flag", "skip_w1", "skip_w2", "skip_w3"), ("ln_exact",),
                                       ("rare", "rare_p2", "rare_loop") + tuple(f"rare_d{h}" for h in range(31))))
    else:
      from mk13 import gen_main
      mk = finish(gen_main(), takes=((), ("spin_o0", "spin_o3", "spin_ln", "spin_rec", "spin_gu", "spin_y",  "rare_p", "rare_a", "rare_b", "rare_e"), ("ev_r0", "ev_r1", "ev_iss"), ("ev_r0", "ev_r1", "ev_r2", "ev_loop", "ev_sel"), ("routed_a", "spin_y_ret", "routed", "own_odd"), ("own_share_ret",)))
    ks = [mk]
    if OPT.get("big"):
        out = []; n = 0
        def bigd():
            nonlocal n
            n += 1
            return ["    s_mul_i32 s94, s94, 1103515245", "    s_add_u32 s94, s94, 12345", "    s_bfe_u32 s95, s94, 0x60012", "    s_cmp_lg_u32 s95, 0", f"    s_cbranch_scc1 big_{n}",
                    "    s_bfe_u32 s95, s94, 0x4000c", f"bigl_{n}:", "    s_sleep 127", "    s_sub_u32 s95, s95, 1", f"    s_cbranch_scc0 bigl_{n}", f"big_{n}:"]
        started = False
        for l in mk.lines:
            t = l.strip()
            if started and (t in ("at_switch:", "post_code:", "tail_code:", "head_code:", "own_share_ret:") or t == "s_barrier"): out += bigd()
            out.append(l)
            if "v_readfirstlane_b32 s3," in t and not started:
                out += ["    s_memrealtime s[94:95]", "    s_waitcnt lgkmcnt(0)", "    s_lshl_b32 s95, s2, 2", "    s_add_u32 s95, s95, s3", f"    s_mul_i32 s95, s95, {2654435761 % 2**31}", "    s_add_u32 s94, s94, s95"] + bigd() + bigd(); started = True
        mk.lines = out
    if OPT.get("jit"):
        seed = int(OPT["jit"]); out = []; n = 0
        def delay():
            nonlocal n
            n += 1
            return ["    s_mul_i32 s94, s94, 1103515245", "    s_add_u32 s94, s94, 12345", f"    s_bfe_u32 s95, s94, 0x30010", "    s_cmp_lg_u32 s95, 0", f"    s_cbranch_scc1 jit_{n}", "    s_sleep 40", f"jit_{n}:"]
        started = False
        for l in mk.lines:
            t = l.strip()
            if started and (t == "s_barrier" or t.startswith("buffer_store_dword ")): out += delay()
            out.append(l)
            if "v_readfirstlane_b32 s3," in t and not started:
                out += ["    s_nop 4", "    s_lshl_b32 s94, s2, 2", "    s_add_u32 s94, s94, s3", f"    s_mul_i32 s94, s94, {2654435761 % 2**31}", f"    s_add_u32 s94, s94, {seed * 7919}"]; started = True
            elif started and t == "s_barrier": out += delay()
        mk.lines = out
    for i, k in enumerate(ks):
        if stamps: add_stamps(k, i)
        k.lines = [l for l in k.lines if not l.strip().startswith((".stamp", ".rt"))]
    i2 = [i for i, l in enumerate(mk.lines) if l.strip() == ".warm2"]
    if i2: mk.lines[i2[0]:i2[0] + 1] = ["    s_cmp_lg_u32 s3, 0", "    s_cselect_b64 exec, -1, 0", "    s_cbranch_execz pg_last", "pg_back2:", "    s_mov_b64 exec, -1"]
    if any(l.strip() == ".warm" for l in mk.lines): page_stubs(mk)
    open(path, "w").write(build_file(ks))

if __name__ == "__main__":
    out = sys.argv[1] if len(sys.argv) > 1 else f"/code/{NAME}.s"
    for a in sys.argv[2:]:
        if "=" in a:
            kk, vv = a.split("=", 1); OPT[kk] = vv.replace("+", " ")
    build(out, stamps="--stamps" in sys.argv)
```
